```python
import torch

def _softmax(x, axis=-1):
    return torch.softmax(x, dim=axis)
def _gelu(x):
    return torch.nn.functional.gelu(x, approximate="tanh")
def _silu(x):
    return torch.nn.functional.silu(x)
def _sigmoid(x):
    return torch.sigmoid(x)
def _layernorm(x, axis=-1, eps=1e-5):
    m = x.mean(dim=axis, keepdim=True)
    v = x.var(dim=axis, keepdim=True, unbiased=False)
    return (x - m) / torch.sqrt(v + eps)
def _scatter_add(tgt, idx, src, axis=0):
    return tgt.clone().index_add_(axis, idx, src)
def _segment_sum(src, seg, n):
    out = torch.zeros((n,) + src.shape[1:], dtype=src.dtype)
    return out.index_add_(0, seg, src)
def _pad(x, pw):
    flat = tuple(v for pair in reversed(pw) for v in pair)
    return torch.nn.functional.pad(x, flat)

kernel_name = 'sequential_preLN__ssm_conv_s4d__mixer_channel_mlp__prompt'

def setup_inputs():

    _w = (lambda a: (lambda t: t.to(torch.bfloat16) if t.is_floating_point() else t)(torch.as_tensor(a)))
    def _A_setup():
        Bsz, L, D, N = 1, 2048, 512, 128
        return {
            "u": _w((lambda *s: torch.randn(*s, dtype=torch.bfloat16) * 0.05)(Bsz, L, D)),
            "log_A_real": _w((lambda *s: torch.randn(*s, dtype=torch.bfloat16) * 3.2)(D, N) * 0.5),
            "A_imag": _w((lambda *s: torch.randn(*s, dtype=torch.bfloat16) * 0.05)(D, N) * 3.14),
            "C_real": _w((lambda *s: torch.randn(*s, dtype=torch.bfloat16) * 0.1)(D, N) / N ** 0.5),
            "C_imag": _w((lambda *s: torch.randn(*s, dtype=torch.bfloat16) * 0.1)(D, N) / N ** 0.5),
            "log_dt": _w((lambda *s: torch.randn(*s, dtype=torch.bfloat16) * 0.05)(D) * 0.5 - 4.0),
            "D_skip": _w((lambda *s: torch.randn(*s, dtype=torch.bfloat16) * 0.05)(D)),
        }
    _A_in = _A_setup()

    def _B_setup():
        B, S, D, F = 1, 2048, 512, 1792
        return {
            "x": _w((lambda *s: torch.randn(*s, dtype=torch.bfloat16) * 0.05)(B, S, D)),
            "w1": _w((lambda *s: torch.randn(*s, dtype=torch.bfloat16) * 1.6)(D, F) * (D ** -0.5)),
            "b1": _w((lambda *s: torch.randn(*s, dtype=torch.bfloat16) * 0.8)(F)),
            "w2": _w((lambda *s: torch.randn(*s, dtype=torch.bfloat16) * 0.05)(F, D) * (F ** -0.5)),
            "b2": _w((lambda *s: torch.randn(*s, dtype=torch.bfloat16) * 0.05)(D)),
        }
    _B_in = _B_setup()

    return {
        "A_u": _A_in["u"],
        "A_log_A_real": _A_in["log_A_real"],
        "A_A_imag": _A_in["A_imag"],
        "A_C_real": _A_in["C_real"],
        "A_C_imag": _A_in["C_imag"],
        "A_log_dt": _A_in["log_dt"],
        "A_D_skip": _A_in["D_skip"],
        "B_x": _B_in["x"],
        "B_w1": _B_in["w1"],
        "B_b1": _B_in["b1"],
        "B_w2": _B_in["w2"],
        "B_b2": _B_in["b2"],
    }

def reference(A_u, A_log_A_real, A_A_imag, A_C_real, A_C_imag, A_log_dt, A_D_skip, B_x, B_w1, B_b1, B_w2, B_b2):
    def _A_ref(u, log_A_real, A_imag, C_real, C_imag, log_dt, D_skip):
        L = u.shape[1]
        dt = torch.exp(log_dt)
        A = -torch.exp(log_A_real) + 1j * A_imag
        C = (C_real + 1j * C_imag) * dt[:, None]
        pos = (lambda x, dt: x.to(dt))(torch.arange(L), log_dt.dtype)
        P = torch.exp((A * dt[:, None])[:, :, None] * pos[None, None, :])
        K = 2.0 * torch.einsum("dn,dnl->dl", C, P).real
        L2 = 2 * L
        u_t = (lambda x, *d: x.permute(*d))(u, 0, 2, 1)
        Kf = (lambda x, *a, **k: torch.fft.rfft(x.float(), *a, **k))(K, L2)
        Uf = (lambda x, *a, **k: torch.fft.rfft(x.float(), *a, **k))(u_t, L2)
        y = (lambda x, *a, **k: torch.fft.irfft(x, *a, **k).to(torch.bfloat16))(Uf * Kf[None, :, :], L2)[:, :, :L]
        y = (lambda x, *d: x.permute(*d))(y, 0, 2, 1)
        return y + u * D_skip[None, None, :]

    def _B_ref(x, w1, b1, w2, b2):
        y = _layernorm(x, axis=-1)
        h = _gelu(torch.einsum("bsd,df->bsf", y, w1) + b1)
        return torch.einsum("bsf,fd->bsd", h, w2) + b2

    x = A_u
    h = x + _A_ref(_layernorm(x, axis=-1), A_log_A_real, A_A_imag, A_C_real, A_C_imag, A_log_dt, A_D_skip)
    h2 = h + _B_ref(_layernorm(h, axis=-1), B_w1, B_b1, B_w2, B_b2)
    return h2
```

```python
NAME = "sequential_preLN__ssm_conv_s4d__mixer_channel_mlp__prompt"
HDR = open("cdna_kernels/%s.s.ref" % NAME).read().split("; Override launch")[0]
KA = dict(x=0, logA=8, Aim=16, Cre=24, Cim=32, logdt=40, Dskip=48, Bx=56, w1=64, b1=72, w2=80, b2=88, out=96, dbg=104, ws=112)
SZ = dict(x=2097152, logA=131072, Aim=131072, Cre=131072, Cim=131072, logdt=1024, Dskip=1024, w1=512*1792*2, b1=3584, w2=512*1792*2, b2=1024, out=2097152, dbg=256, ws=268435456)

class Asm:
    def __init__(self):
        self.l = []
        self.nlab = 0
    def __call__(self, s):
        for line in s.strip("\n").split("\n"):
            self.l.append(line if line.strip().endswith(":") else "    " + line.strip())
    def label(self, base="L"):
        self.nlab += 1
        return "%s_%d" % (base, self.nlab)
    def text(self):
        return "\n".join(self.l) + "\n"

def kernel_begin(a, name):
    a.l.append(".globl %s" % name)
    a.l.append(".p2align 8")
    a.l.append(".type %s,@function" % name)
    a.l.append("%s:" % name)

def descriptor(name, vgpr, accum, sgpr=102, extra=""):
    return """.amdhsa_kernel %s
  .amdhsa_next_free_vgpr %d
  .amdhsa_next_free_sgpr %d
  .amdhsa_accum_offset %d
  .amdhsa_group_segment_fixed_size 0
  .amdhsa_kernarg_size 120
  .amdhsa_user_sgpr_count 2
  .amdhsa_user_sgpr_kernarg_segment_ptr 1
  .amdhsa_system_sgpr_workgroup_id_x 1
%s.end_amdhsa_kernel
""" % (name, vgpr, sgpr, accum, extra)

def build_file(launches, body, descs):
    s = HDR
    if len(launches) == 1 and launches[0][0] == NAME + "_kernel":
        k, g, b, lds = launches[0]
        s += "; @launch grid=(%d,1,1) block=(%d,1,1) lds=%d\n" % (g, b, lds)
    else:
        for k, g, b, lds in launches:
            s += "; @launch kernel=%s grid=(%d,1,1) block=(%d,1,1) lds=%d\n" % (k, g, b, lds)
    s += '.amdgcn_target "amdgcn-amd-amdhsa--gfx950"\n.text\n'
    s += body
    s += '.section .rodata,"a"\n'
    for d in descs:
        s += ".p2align 6\n" + d
    return s

def srd(a, sreg, ptr_lo, size):
    if sreg != ptr_lo:
        a("s_mov_b32 s%d, s%d" % (sreg, ptr_lo))
        a("s_mov_b32 s%d, s%d" % (sreg + 1, ptr_lo + 1))
    a("s_mov_b32 s%d, 0x%x" % (sreg + 2, size))
    a("s_mov_b32 s%d, 0x20000" % (sreg + 3))

def load_srd(a, sreg, key):
    a("s_load_dwordx2 s[%d:%d], s[0:1], %d" % (sreg, sreg + 1, KA[key]))
    a("s_mov_b32 s%d, 0x%x" % (sreg + 2, SZ[key]))
    a("s_mov_b32 s%d, 0x20000" % (sreg + 3))
```

```python
import re
TRANS = ("v_exp_f32", "v_log_f32", "v_rcp_f32", "v_rsq_f32", "v_sqrt_f32", "v_sin_f32", "v_cos_f32", "v_rcp_iflag_f32")
RE_REG = re.compile(r"\b([vas])(\d+)\b|\b([vas])\[(\d+):(\d+)\]|\b(vcc|exec|m0|vcc_lo|vcc_hi|exec_lo|exec_hi)\b")
def regs(tok):
    out = []
    for m in RE_REG.finditer(tok):
        if m.group(1): out.append(m.group(1) + m.group(2))
        elif m.group(3): out += [m.group(3) + str(i) for i in range(int(m.group(4)), int(m.group(5)) + 1)]
        else: out.append(m.group(6).split("_")[0])
    return out
def split_ops(s):
    ops, depth, cur = [], 0, ""
    for ch in s:
        if ch == "[": depth += 1
        if ch == "]": depth -= 1
        if ch == "," and depth == 0: ops.append(cur.strip()); cur = ""
        else: cur += ch
    if cur.strip(): ops.append(cur.strip())
    return ops
class I:
    pass
def parse(line):
    s = line.split(";")[0].strip()
    if not s or s.endswith(":") or s.startswith("."): return None
    p = s.split(None, 1)
    op = p[0]; rest = p[1] if len(p) > 1 else ""
    base = re.sub(r"_(e32|e64|dpp|sdwa)$", "", op)
    ops = split_ops(rest)
    i = I(); i.op = base; i.text = s; i.w = []; i.r = []; i.kind = "other"; i.srcc = []; i.ab = []; i.data = []
    i.dpp = op.endswith("_dpp") or bool(re.search(r"quad_perm|row_shr|row_shl|row_ror|wave_sh|wave_ro|row_mirror|row_half_mirror|row_bcast|row_newbcast", rest))
    R = [regs(o.split(" ")[0] if not o.startswith("-") else o) for o in ops]
    R = [regs(re.split(r"\s+(?=[a-z_]+:|offen|idxen|sc0|sc1|nt|lds|off\b)", o)[0]) for o in ops]
    if base.startswith("v_mfma"):
        i.kind = "mfma"; i.passes = 8 if "32x32x16" in base else (4 if "16x16x32" in base else 16)
        i.w = R[0]; i.ab = R[1] + R[2]; i.srcc = R[3] if len(R) > 3 else []; i.r = i.ab + i.srcc
    elif base.startswith("v_"):
        i.kind = "valu"
        if base in ("v_swap_b32", "v_permlane16_swap_b32", "v_permlane32_swap_b32"):
            i.w = R[0] + R[1]; i.r = R[0] + R[1]
        elif base in ("v_add_co_u32", "v_sub_co_u32", "v_addc_co_u32", "v_subb_co_u32", "v_mad_u64_u32", "v_div_scale_f32"):
            i.w = R[0] + R[1]; i.r = sum(R[2:], [])
        elif base == "v_nop": pass
        else:
            i.w = R[0]; i.r = sum(R[1:], [])
            if base.startswith(("v_fmac", "v_dot2c", "v_pk_fmac", "v_writelane")) or i.dpp: i.r += R[0]
            if base.startswith("v_cmpx"): i.w += ["exec"]
            if base == "v_cndmask_b32" and len(R) == 3: i.r += ["vcc"]
        i.trans = base in TRANS
        i.dl = base.startswith("v_dot")
    elif base.startswith("ds_"):
        i.kind = "ds"
        if base.startswith(("ds_read", "ds_bpermute", "ds_permute", "ds_swizzle")): i.w = R[0]; i.r = sum(R[1:], [])
        else: i.r = sum(R, [])
        if "addtid" in base: i.r += ["m0"]; i.m0 = True
    elif base.startswith(("buffer_", "global_")):
        i.kind = "vmem"
        lds = bool(re.search(r"\blds\b", rest)) or "_lds_" in base
        if "load" in base and not lds: i.w = R[0]; i.r = sum(R[1:], [])
        else:
            i.r = sum(R, [])
            if "store" in base and ("x3" in base or "x4" in base):
                i.data = R[0] if base.startswith("buffer_") else R[1]
        if lds: i.r += ["m0"]; i.m0 = True
    elif base.startswith("s_"):
        i.kind = "salu"
        if base in ("s_nop", "s_waitcnt", "s_barrier", "s_endpgm", "s_branch", "s_sleep", "s_setprio") or base.startswith(("s_cbranch", "s_cmp")):
            i.r = sum(R, [])
        else:
            i.w = R[0] if R else []; i.r = sum(R[1:], [])
            if "saveexec" in base: i.w += ["exec"]
    return i
def need(p, c):
    n = 0
    pw, cr, cw = set(p.w), set(c.r), set(c.w)
    if p.kind == "valu":
        vw = {x for x in pw if x[0] in "va" and x != "vcc"}
        sw = pw - vw
        if c.kind == "mfma" and vw & cr: n = max(n, 2)
        if c.kind == "mfma" and "exec" in pw: n = max(n, 4)
        if c.kind == "valu":
            if c.dpp and vw & cr: n = max(n, 2)
            if c.dpp and "exec" in pw: n = max(n, 5)
            if c.op.startswith("v_permlane") and vw & cr: n = max(n, 2)
            if c.op in ("v_readlane_b32", "v_readfirstlane_b32") and vw & cr: n = max(n, 1)
            if c.op in ("v_readlane_b32", "v_writelane_b32") and sw & cr: n = max(n, 4)
            if c.op in ("v_readlane_b32", "v_readfirstlane_b32", "v_writelane_b32") and "exec" in pw: n = max(n, 4)
            if sw & cr: n = max(n, 2)
            if p.trans and not c.trans and vw & cr: n = max(n, 1)
            if p.dl and (vw & (cr | cw)):
                if c.op != p.op: n = max(n, 3)
                else:
                    ab = set(sum([regs(o) for o in split_ops(c.text.split(None, 1)[1])[1:3]], []))
                    if vw & ab: n = max(n, 3)
        if p.dl and c.kind in ("vmem", "ds", "mfma") and vw & cr: n = max(n, 3)
        if p.trans and c.kind in ("vmem", "ds", "mfma") and vw & cr: n = max(n, 2)
        if c.kind == "vmem" and sw & cr: n = max(n, 5)
        if c.kind == "salu" and sw & cr: n = max(n, 1)
    elif p.kind == "mfma":
        d = {4: 8, 8: 12, 16: 20}[p.passes]
        if c.kind == "mfma":
            if pw & set(c.ab): n = max(n, d)
            if pw & set(c.srcc):
                if not (p.w == c.srcc and p.passes == c.passes): n = max(n, d - 2)
            elif pw & cw: n = max(n, d)
        elif c.kind in ("valu", "vmem", "ds"):
            if pw & (cr | cw): n = max(n, d)
        if c.kind == "valu" and set(p.srcc) & cw: n = max(n, {4: 3, 8: 7, 16: 15}[p.passes])
    elif p.kind == "salu":
        if "m0" in pw and getattr(c, "m0", False): n = max(n, 1)
    elif p.kind == "vmem":
        if p.data and set(p.data) & cw: n = max(n, 2 if c.kind == "valu" else 1)
    return n
def states(i):
    if i.op == "s_nop": return int(i.text.split()[1], 0) + 1
    return 1
def fix(lines, verbose=False):
    out, hist, added = [], [], 0
    pos = 0
    for ln in lines:
        i = parse(ln)
        if i is None: out.append(ln); continue
        req = 0
        for p, ppos in reversed(hist):
            dist = pos - ppos
            if dist >= 20: break
            n = need(p, i)
            if n > dist: req = max(req, n - dist)
        if req:
            if verbose: print("hazard: +%d before %s" % (req, i.text))
            k = req
            while k > 0:
                m = min(k, 16); out.append("    s_nop %d" % (m - 1)); k -= m
            pos += req; added += 1
        out.append(ln)
        pos += states(i)
        hist.append((i, pos))
        if len(hist) > 40: hist.pop(0)
    return out, added
```

```python
import sys, math, struct
from asmlib import *
import hazard

opt = dict(kv.split("=") for kv in sys.argv[2:])
OI = lambda k, d=0: int(opt.get(k, d))
STAMPS = OI("stamps")
def f2u(x): return struct.unpack("<I", struct.pack("<f", x))[0]

S1, F2, X1, H2, W2F, H3 = 0x4000, 0x10000, 0x100000, 0x500000, 0x700000, 0x900000
STAMP_OFF = 0x8000000
TROW = 544; TCH = 64 * TROW; TBL = 114688 - 2 * TCH
KC = 114688; KCOPY = 4160; KCH = 4 * KCOPY
UB = KC + 2 * KCH; UCH = 4576
CB = UB + 2 * UCH
LDS_BYTES = CB + 1024
EX = KC
WS, XS, W1S, W2S, OUTS = 4, 8, 12, 16, 20
sV, sXCD, sIDX, sTAG, sBUD = 24, 25, 26, 27, 28
sC, sZ = 29, 30
sH3OWN, sH2RD, sW1OFF, sM0W, sW2RD, sH3RD = 31, 32, 33, 34, 35, 60
sLDT, sDSK = 61, 62
T0, T1, T2, T3 = 64, 65, 66, 67
P = 36
sST = 70

a = Asm()
ool = Asm()
name = NAME + "_kernel"

class Ctr:
    def __init__(self, nm, mx): self.nm, self.mx, self.q = nm, mx, []
    def issue(self, tag): self.q.append(tag)
    def wait(self, tag):
        idx = max(i for i, t in enumerate(self.q) if t == tag)
        n = len(self.q) - 1 - idx
        a("s_waitcnt %s(%d)" % (self.nm, min(n, self.mx)))
        self.q = self.q[idx + 1:]
    def has(self, tag): return tag in self.q
    def drain(self):
        a("s_waitcnt %s(0)" % self.nm); self.q = []
vm = Ctr("vmcnt", 63); lg = Ctr("lgkmcnt", 15)
def vmem(s, tag): a(s); vm.issue(tag)
def ds(s, tag): a(s); lg.issue(tag)
nst = [0]
def stamp():
    if STAMPS and nst[0] < 16:
        if lg.q: lg.drain()
        a("s_memrealtime s[%d:%d]" % (sST + 2 * nst[0], sST + 1 + 2 * nst[0]))
        a("s_waitcnt lgkmcnt(0)")
        nst[0] += 1
def vr(b, n): return "v[%d:%d]" % (b, b + n - 1)
def ar(b, n): return "a[%d:%d]" % (b, b + n - 1)
def sr(b, n): return "s[%d:%d]" % (b, b + n - 1)
def budget_loop(o, lab):
    o("s_sub_u32 s%d, s%d, 1\ns_cbranch_scc0 %s\ns_mov_b32 s%d, 0" % (sBUD, sBUD, lab, sBUD))

kernel_begin(a, name)
if STAMPS:
    a("s_memrealtime s[%d:%d]" % (sST, sST + 1)); nst[0] = 1
a("s_cmp_lt_u32 s2, 256\ns_cbranch_scc1 L_go\ns_endpgm\nL_go:")
a("s_load_dwordx16 s[36:51], s[0:1], 0")
a("s_load_dwordx8 s[52:59], s[0:1], 64")
a("s_load_dwordx2 s[%d:%d], s[0:1], %d" % (OUTS, OUTS + 1, KA["out"]))
a("s_load_dwordx2 s[%d:%d], s[0:1], %d" % (WS, WS + 1, KA["ws"]))
a("s_getpc_b64 s[68:69]\nL_pc:")
a("v_lshlrev_b32 v4, 7, v0\nv_min_u32 v4, L_code_end-L_pc-4, v4")
vmem("global_load_dword v5, v4, s[68:69]", "code")
a("v_and_b32 v1, 63, v0\nv_lshrrev_b32 v4, 6, v0\nv_lshlrev_b32 v2, 4, v0\nv_lshlrev_b32 v3, 4, v1")
a("v_readfirstlane_b32 s%d, v4" % sV)
a("s_and_b32 s%d, s2, 7\ns_lshr_b32 s%d, s2, 3" % (sXCD, sIDX))
a("s_mov_b32 s%d, 0x40000" % sBUD)
a("s_lshr_b32 s%d, s%d, 1\ns_and_b32 s%d, s%d, 1" % (sC, sV, sZ, sV))
for s_, k in ((WS, "ws"), (XS, "x"), (W1S, "w1"), (W2S, "w2"), (OUTS, "out")):
    a("s_mov_b32 s%d, 0x%x\ns_mov_b32 s%d, 0x20000" % (s_ + 2, SZ[k], s_ + 3))
a("v_and_b32 v6, 7, v1\nv_lshrrev_b32 v7, 3, v1")
a("v_lshlrev_b32 v8, 12, v6\nv_lshl_add_u32 v8, v7, 4, v8")
a("v_lshlrev_b32 v59, 16, v7\nv_lshl_add_u32 v59, v6, 4, v59")
a("s_lshl_b32 s%d, s%d, 16\ns_lshl_b32 s%d, s%d, 15\ns_add_u32 s%d, s%d, s%d" % (T0, sIDX, T1, sZ, T0, T0, T1))
a("s_lshl_b32 s%d, s%d, 11\ns_add_u32 s%d, s%d, s%d\ns_lshl_b32 s%d, s%d, 7\ns_add_u32 s%d, s%d, s%d" % (T1, sC, T0, T0, T1, T1, sXCD, T0, T0, T1))
a("v_lshrrev_b32 v9, 5, v1\nv_and_b32 v6, 31, v1\nv_lshlrev_b32 v9, 10, v9\nv_lshl_add_u32 v9, v6, 4, v9")
a("s_lshr_b32 s%d, s2, 7\ns_lshl_b32 s%d, s%d, 20\ns_and_b32 s%d, s2, 63\ns_lshl_b32 s%d, s%d, 14\ns_add_u32 s%d, s%d, s%d" % (T1, T1, T1, T2, T2, T2, T1, T1, T2))
a("s_lshl_b32 s%d, s%d, 12\ns_add_u32 s%d, s%d, s%d\ns_bfe_u32 s%d, s2, 0x10006\ns_lshl_b32 s%d, s%d, 11\ns_add_u32 s%d, s%d, s%d" % (T2, sV, T1, T1, T2, T2, T2, T2, T1, T1, T2))
a("s_lshl_b32 s%d, s2, 9\nv_lshl_add_u32 v30, v0, 1, s%d" % (T2, T2))
a("v_lshrrev_b32 v6, 3, v0\nv_and_b32 v7, 7, v0\nv_lshlrev_b32 v60, 15, v6\nv_lshl_add_u32 v60, v7, 4, v60")
for i in range(4): a("v_mov_b32 v%d, -1" % (32 + i))
a("v_and_b32 v6, 127, v0\nv_lshrrev_b32 v7, 7, v0\nv_lshlrev_b32 v61, 13, v7\nv_lshl_add_u32 v61, v6, 2, v61")
a("v_lshrrev_b32 v62, 5, v6\nv_lshlrev_b32 v62, 18, v62\nv_and_b32 v6, 31, v6\nv_lshl_add_u32 v6, v7, 5, v6\nv_lshl_add_u32 v62, v6, 4, v62")
a("s_waitcnt lgkmcnt(0)")
a("s_mov_b64 s[%d:%d], s[36:37]\ns_mov_b64 s[%d:%d], s[52:53]\ns_mov_b64 s[%d:%d], s[56:57]" % (XS, XS + 1, W1S, W1S + 1, W2S, W2S + 1))
vmem("buffer_load_dwordx4 v[10:13], v8, %s, s%d offen" % (sr(XS, 4), T0), "xt")
vmem("buffer_load_dwordx4 v[14:17], v8, %s, s%d offen offset:1024" % (sr(XS, 4), T0), "xt")
vmem("buffer_load_dwordx4 v[18:21], v9, %s, s%d offen" % (sr(XS, 4), T1), "xs")
vmem("buffer_load_dwordx4 v[22:25], v9, %s, s%d offen offset:512" % (sr(XS, 4), T1), "xs")
a("s_lshl_b32 s%d, s2, 2" % T2)
a("s_load_dword s%d, s[%d:%d], 0x0" % (sTAG, WS, WS + 1))
a("s_load_dword s%d, s[46:47], s%d" % (sLDT, T2))
a("s_load_dword s%d, s[48:49], s%d" % (sDSK, T2))
for i in range(4):
    vmem("global_load_ushort v%d, v30, s[%d:%d]" % (26 + i, 38 + 2 * i, 39 + 2 * i), "par")
a("s_lshl_b32 s3, s2, 7\ns_add_u32 s3, s3, 0x%x\ns_add_u32 s%d, s3, 0x100000" % (H2, T0))
vmem("buffer_store_dwordx4 v[32:35], v60, %s, s3 offen sc1" % sr(WS, 4), "clr2")
vmem("buffer_store_dwordx4 v[32:35], v60, %s, s%d offen sc1" % (sr(WS, 4), T0), "clr2")
a("s_lshr_b32 s%d, s2, 1\ns_lshl_b32 s%d, s%d, 14\ns_and_b32 s%d, s2, 1\ns_lshl_b32 s%d, s%d, 9\ns_add_u32 s%d, s%d, s%d\ns_add_u32 s%d, s%d, 0x1000" % (T0, T0, T0, T1, T1, T1, T0, T0, T1, T1, T0))
for e in range(8):
    vmem("buffer_load_dword v%d, v61, %s, s%d offen offset:%d" % (36 + e, sr(W2S, 4), T0 if e < 4 else T1, 1024 * (e & 3)), "w2p")
a("s_and_b32 s%d, s%d, 15\ns_mul_i32 s%d, s%d, 224" % (T0, sIDX, sW1OFF, T0))
a("v_min_u32 v6, 111, v0\nv_lshl_add_u32 v6, v6, 1, s%d" % sW1OFF)
vmem("global_load_ushort v31, v6, s[54:55]", "b1")
a("s_movk_i32 s%d, 4682\ns_movk_i32 s%d, %d" % (T0, T1, 3584 - 224))
for i in range(7):
    a("v_add_u32 v6, %d, v0\nv_mul_u32_u24 v7, s%d, v6\nv_lshrrev_b32 v7, 16, v7" % (256 * i, T0))
    a("v_lshlrev_b32 v6, 4, v6\nv_mad_u32_u24 v%d, v7, s%d, v6" % (52 + i, T1))
a("s_lshl_b32 s%d, s%d, 10" % (sM0W, sV))
dma_i = [0]
def w1_dma(n):
    for _ in range(n):
        i = dma_i[0]
        if i >= 28: return
        a("s_add_u32 m0, s%d, %d" % (sM0W, 4096 * i))
        if i and i % 7 == 0: a("s_add_u32 s%d, s%d, %d" % (sW1OFF, sW1OFF, 128 * 3584))
        vmem("buffer_load_dwordx4 v%d, %s, s%d offen lds" % (52 + i % 7, sr(W1S, 4), sW1OFF), "w1")
        dma_i[0] += 1
w1_dma(OI("dma0", 7))

a("v_and_b32 v6, 15, v1\nv_lshrrev_b32 v7, 4, v1")
a("s_mov_b32 s%d, 0x3c393633\ns_mov_b32 s%d, 0x03030303\ns_cmp_eq_u32 s%d, 0" % (T0, T1, sZ))
a("s_cmov_b32 s%d, 0x2e292010" % T0)
a("s_cmov_b32 s%d, 0x02020100" % T1)
a("s_mul_i32 s%d, s%d, %d\ns_add_u32 s%d, s%d, %d" % (T2, sC, TCH, T2, T2, TBL))
a("v_lshrrev_b32 v8, 2, v6\nv_lshlrev_b32 v8, 3, v8")
a("v_bfe_u32 v9, s%d, v8, 8\nv_bfe_u32 v85, s%d, v8, 8\nv_sub_u32 v85, 0, v85" % (T0, T1))
a("v_and_b32 v8, 3, v6\nv_lshl_add_u32 v86, v7, 4, s%d" % T2)
a("s_movk_i32 s%d, %d" % (T3, TROW))
for q in range(4):
    a("v_add_u32 v87, %d, v8\nv_cvt_f32_u32 v87, v87\nv_ldexp_f32 v87, v87, v85\nv_rndne_f32 v87, v87\nv_cvt_u32_f32 v87, v87" % (4 * q))
    a("v_add_u32 v87, v87, v9\nv_mad_u32_u24 v%d, v87, s%d, v86" % (80 + q, T3))
a("v_mad_u32_u24 v84, v6, s%d, v86" % T3)
a("s_mul_i32 s%d, s%d, %d\ns_lshl_b32 s%d, s%d, 11\ns_sub_u32 s%d, s%d, s%d\ns_add_u32 s%d, s%d, %d" % (T0, sC, KCH, T1, sZ, T1, T0, T1, T1, T1, KC + 4064))
a("v_lshlrev_b32 v85, 5, v1\nv_sub_u32 v85, s%d, v85" % T1)
a("s_lshl_b32 s%d, s%d, 8\ns_sub_u32 s%d, s%d, s%d\ns_add_u32 s%d, s%d, %d" % (T1, sZ, T0, T0, T1, T0, T0, KC + 288))
a("v_add_u32 v8, 1, v6\nv_and_b32 v9, 3, v8\nv_and_b32 v8, 28, v8\nv_lshlrev_b32 v8, 1, v8")
a("s_movk_i32 s%d, %d" % (T3, KCOPY))
a("v_lshl_add_u32 v86, v7, 4, s%d\nv_sub_u32 v86, v86, v8\nv_mad_u32_u24 v86, v9, s%d, v86" % (T0, T3))
a("s_mul_i32 s%d, s%d, %d\ns_sub_u32 s%d, s%d, s%d\ns_add_u32 s%d, s%d, %d" % (T0, sC, UCH, T0, T0, T1, T0, T0, UB + 256))
a("v_lshl_add_u32 v87, v7, 4, s%d\nv_lshl_add_u32 v87, v6, 5, v87" % T0)
for i in range(4): a("v_mov_b32 v%d, 0" % (44 + i))
a("v_lshrrev_b32 v8, 5, v1\nv_and_b32 v9, 31, v1\nv_min_u32 v9, 29, v9\ns_movk_i32 s%d, %d" % (T3, UCH))
a("v_lshlrev_b32 v9, 4, v9\nv_mad_u32_u24 v8, v8, s%d, v9" % T3)
a("v_add_u32 v8, %d, v8" % UB)
a("ds_write_b128 v8, v[44:47]")
a("v_bfe_u32 v8, v1, 1, 3\nv_and_b32 v9, 1, v1\ns_movk_i32 s%d, %d\nv_lshlrev_b32 v9, 4, v9\nv_mad_u32_u24 v8, v8, s%d, v9" % (T3, KCOPY, T3))
a("v_add_u32 v8, %d, v8" % (KC + 4096))
a("ds_write_b128 v8, v[44:47]")
a("s_waitcnt lgkmcnt(0)")
a("s_add_u32 s%d, s%d, 0x9e3779b9" % (sTAG, sTAG))
for j in range(4): a("v_mov_b32 v%d, s%d\nv_mov_b32 v%d, s%d" % (66 + 4 * j, sTAG, 67 + 4 * j, sTAG))
a("s_lshl_b32 s%d, s%d, 19\ns_lshr_b32 s%d, s%d, 4\ns_lshl_b32 s%d, s%d, 13\ns_add_u32 s%d, s%d, s%d" % (T0, sXCD, T1, sIDX, T1, T1, T0, T0, T1))
a("s_lshl_b32 s%d, s%d, 12\ns_add_u32 s%d, s%d, s%d\ns_and_b32 s%d, s%d, 15\ns_lshl_b32 s%d, s%d, 8\ns_add_u32 s%d, s%d, s%d" % (T1, sC, T0, T0, T1, T1, sIDX, T1, T1, T0, T0, T1))
a("s_lshl_b32 s%d, s%d, 7\ns_add_u32 s%d, s%d, s%d\ns_add_u32 s%d, s%d, 0x%x" % (T1, sZ, T0, T0, T1, T0, T0, X1))
a("v_mov_b32 v6, 0\nv_mov_b32 v7, 0\nv_mov_b32 v8, 0x3f803f80")
stamp()
vm.wait("xt")
for j in range(4):
    a("v_mov_b32 v%d, v%d\nv_mov_b32 v%d, v%d" % (64 + 4 * j, 10 + j, 65 + 4 * j, 14 + j))
    vmem("buffer_store_dwordx4 %s, v59, %s, s%d offen sc1" % (vr(64 + 4 * j, 4), sr(WS, 4), T0), "x1s")
    if j < 3: a("s_add_u32 s%d, s%d, 0x4000" % (T0, T0))
vm.wait("xs")
for i in range(8):
    a("v_dot2c_f32_bf16 v6, v%d, v8\nv_dot2c_f32_bf16 v7, v%d, v%d" % (18 + i, 18 + i, 18 + i))
for ctl in ("quad_perm:[1,0,3,2] row_mask:0xf", "quad_perm:[2,3,0,1] row_mask:0xf", "row_half_mirror row_mask:0xf", "row_mirror row_mask:0xf", "row_bcast:15 row_mask:0xa"):
    a("v_add_f32_dpp v6, v6, v6 %s bank_mask:0xf\nv_add_f32_dpp v7, v7, v7 %s bank_mask:0xf" % (ctl, ctl))
a("v_mul_f32 v6, 0x%x, v6\nv_mul_f32 v7, 0x%x, v7" % (f2u(1 / 512), f2u(1 / 512)))
a("v_fma_f32 v7, -v6, v6, v7\nv_max_f32 v7, 0, v7\nv_add_f32 v7, 0x%x, v7\nv_rsq_f32 v20, v7" % f2u(1e-5))
a("v_readlane_b32 s%d, v6, 31\nv_mov_b32 v21, s%d\nv_readlane_b32 s%d, v20, 31" % (T0, sTAG, T1))
a("s_lshl_b32 s%d, s2, 2\ns_add_u32 s%d, s%d, s%d\ns_lshl_b32 s%d, s%d, 4\ns_add_u32 s%d, s%d, 0x%x" % (T2, T2, T2, sV, T2, T2, T2, T2, S1))
a("v_cvt_pk_bf16_f32 v18, s%d, v6\nv_mov_b32 v19, s%d\nv_mov_b32 v9, 0" % (T0, T1))
vm.wait("clr2")
a("s_mov_b32 exec_lo, 0\ns_mov_b32 exec_hi, 0x80000000")
vmem("buffer_store_dwordx4 v[18:21], v9, %s, s%d offen sc1" % (sr(WS, 4), T2), "s1s")
a("s_mov_b64 exec, -1")
stamp()
vm.wait("b1")
a("s_mov_b32 s%d, 0x05040100\ns_mov_b32 s%d, 0x07060302" % (T0, T1))
for i in range(4):
    a("v_perm_b32 v%d, v%d, v%d, s%d\nv_perm_b32 v%d, v%d, v%d, s%d" % (44 + i, 37 + 2 * i, 36 + 2 * i, T0, 48 + i, 37 + 2 * i, 36 + 2 * i, T1))
a("s_and_b32 s%d, s2, 1\ns_lshl_b32 s%d, s%d, 20\ns_lshr_b32 s%d, s2, 1\ns_lshl_b32 s%d, s%d, 11\ns_add_u32 s%d, s%d, s%d\ns_add_u32 s%d, s%d, 0x%x" % (T0, T0, T0, T1, T1, T1, T0, T0, T1, T0, T0, W2F))
vmem("buffer_store_dwordx4 v[44:47], v62, %s, s%d offen sc1" % (sr(WS, 4), T0), "w2s")
vmem("buffer_store_dwordx4 v[48:51], v62, %s, s%d offen offset:1024 sc1" % (sr(WS, 4), T0), "w2s")
a("v_lshlrev_b32 v31, 16, v31\nv_and_b32 v6, 127, v0\nv_lshlrev_b32 v6, 2, v6\nv_add_u32 v6, %d, v6" % (CB + 512))
a("v_cmp_gt_u32 vcc, 128, v0\ns_and_saveexec_b64 s[%d:%d], vcc" % (T0, T1))
a("ds_write_b32 v6, v31")
a("s_mov_b64 exec, -1")
w1_dma(OI("dma1", 0))

LOG2E = 1.4426950408889634
a("s_lshl_b32 s%d, s%d, 4\ns_lshr_b32 s%d, s%d, s%d\ns_lshl_b32 s%d, s%d, 16" % (T0, sC, sLDT, sLDT, T0, sLDT, sLDT))
a("s_lshr_b32 s%d, s%d, s%d\ns_lshl_b32 s%d, s%d, 16" % (sDSK, sDSK, T0, sDSK, sDSK))
a("v_mov_b32 v6, 0x%x\nv_mul_f32 v7, s%d, v6" % (f2u(LOG2E), sLDT))
for i in range(4): a("v_lshlrev_b32 v%d, 16, v%d" % (26 + i, 26 + i))
a("v_mul_f32 v26, v26, v6\nv_exp_f32 v7, v7\nv_exp_f32 v26, v26")
a("v_cvt_pk_bf16_f32 v7, v7, v26")
a("v_and_b32 v26, 0xffff0000, v7\nv_lshlrev_b32 v7, 16, v7")
a("v_mul_f32 v26, v26, v7\nv_mul_f32 v27, v27, v7")
a("v_mul_f32 v26, 0x%x, v26\nv_mul_f32 v27, 0.15915494, v27" % f2u(-LOG2E))
a("v_add_f32 v7, v7, v7\nv_mul_f32 v166, v28, v7\nv_mul_f32 v167, v29, -v7".replace("v_mul_f32 v167, v29, -v7", "v_mul_f32_e64 v167, v29, -v7"))
PW = lambda j: 132 + 2 * j
W256 = 132
for dst, p in ((PW(1), 1.0), (PW(16), 16.0), (W256, 256.0)):
    if p == 1.0: a("v_exp_f32 v8, v26\nv_fract_f32 v9, v27")
    else: a("v_mul_f32 v8, 0x%x, v26\nv_mul_f32 v9, 0x%x, v27\nv_exp_f32 v8, v8\nv_fract_f32 v9, v9" % (f2u(p), f2u(p)))
    a("v_cos_f32 v%d, v9\nv_sin_f32 v%d, v9" % (dst, dst + 1))
    a("v_pk_mul_f32 %s, %s, v[8:9] op_sel_hi:[1,0]" % (vr(dst, 2), vr(dst, 2)))
a("s_mul_i32 s%d, s%d, %d\ns_lshl_b32 s%d, s%d, 8\ns_add_u32 s%d, s%d, s%d\ns_add_u32 m0, s%d, %d" % (T0, sC, TCH, T1, sZ, T0, T0, T1, T0, TBL - 30720))
cv = [0]
def put(slot, reg):
    d = 180 + cv[0] % 8; cv[0] += 1
    if reg is None: a("v_mov_b32 v%d, 0x3f80" % d)
    else: a("v_cvt_pk_bf16_f32 v%d, v%d, v%d" % (d, reg, reg + 1))
    a("ds_write_addtid_b32 v%d offset:%d" % (d, slot * TROW + 30720))
def cmul(dst, z, w, tmp, conj=False):
    a("v_pk_mul_f32 %s, %s, %s op_sel_hi:[1,0]" % (vr(tmp, 2), vr(z, 2), vr(w, 2)))
    a("v_pk_fma_f32 %s, %s, %s, %s op_sel:[1,1,0] op_sel_hi:[0,1,1] %s:[1,0,0]" % (vr(dst, 2), vr(z, 2), vr(w, 2), vr(tmp, 2), "neg_hi" if conj else "neg_lo"))
put(16, None); put(17, PW(1)); put(0, 166)
for j in range(1, 16):
    gz, gd = (166, 168) if j % 2 else (168, 166)
    cmul(gd, gz, PW(16), 170, conj=True)
    if j >= 2: cmul(PW(j), PW(j - 1), PW(1), 172)
    put(j, gd)
    if j >= 2: put(16 + j, PW(j))
slot = 32
wm = W256
for m in range(1, 8):
    step = [1, 2, 4, 4, 8, 8, 8, 8][m]
    if m > 1:
        nw = 174 if m % 2 == 0 else 176
        cmul(nw, wm, W256, 170); wm = nw
    put(slot, wm); slot += 1
    for k, rho in enumerate(range(step, 17, step)):
        d, t = (178, 172) if k % 2 else (168, 166)
        cmul(d, wm, PW(rho), t); put(slot, d); slot += 1
assert slot == 63
vm.wait("w2s")
a("s_lshl_b32 s%d, s2, 2\ns_add_u32 s%d, s%d, s%d\ns_lshl_b32 s%d, s%d, 6\ns_add_u32 s%d, s%d, 0x%x" % (T2, T2, T2, sV, T2, T2, T2, T2, F2))
a("v_mov_b32 v9, 0\ns_mov_b64 exec, 1")
vmem("buffer_store_dword v66, v9, %s, s%d offen sc1" % (sr(WS, 4), T2), "f2s")
a("s_mov_b64 exec, -1")
a("s_waitcnt lgkmcnt(0)\ns_barrier")
stamp()
def gather1(o, track):
    o("s_lshl_b32 s%d, s2, 14\ns_add_u32 s%d, s%d, 0x%x\ns_mov_b32 s%d, 0x%x" % (T0, T0, T0, X1, T1, S1))
    for j in range(4):
        o("buffer_load_dwordx4 %s, v2, %s, s%d offen sc1" % (vr(96 + 4 * j, 4), sr(WS, 4), T0))
        o("buffer_load_dwordx4 %s, v2, %s, s%d offen sc1" % (vr(112 + 4 * j, 4), sr(WS, 4), T1))
        if track: vm.issue("g1"); vm.issue("g1")
        if j < 3: o("s_add_u32 s%d, s%d, 0x1000\ns_add_u32 s%d, s%d, 0x1000" % (T0, T0, T1, T1))
def check1(o):
    o("v_xor_b32 v6, s%d, v99" % sTAG)
    for j in range(1, 8): o("v_xor_b32 v7, s%d, v%d\nv_or_b32 v6, v6, v7" % (sTAG, 99 + 4 * j))
    o("v_cmp_ne_u32 vcc, 0, v6")
G1EARLY = OI("g1early", 1)
if G1EARLY: gather1(a, True)
def kread(s):
    b = 128 + 20 * (s % 3)
    ds("ds_read_b128 %s, v84 offset:%d" % (vr(b, 4), 64 * s), ("k", s))
    for q in range(4): ds("ds_read_b128 %s, v%d offset:%d" % (vr(b + 4 + 4 * q, 4), 80 + q, 64 * s), ("k", s))
kread(0); kread(1)
for s in range(8):
    if s + 2 < 8: kread(s + 2)
    lg.wait(("k", s))
    b = 128 + 20 * (s % 3)
    for q in range(4):
        a("v_mfma_f32_16x16x32_bf16 %s, %s, %s, %s" % (vr(224 + 4 * q, 4), vr(b + 4 + 4 * q, 4), vr(b, 4), vr(224 + 4 * q, 4) if s else "0"))
a("s_cmp_eq_u32 s%d, 0\ns_cselect_b32 s%d, s%d, 0" % (sZ, T0, sDSK))
a("v_mov_b32 v6, 0\nv_writelane_b32 v6, s%d, 0" % T0)
a("v_mov_b32 v240, v239\nv_mov_b32 v241, v239\nv_mov_b32 v242, v239\nv_add_f32 v224, v224, v6")
for i in (1, 2, 0): a("v_mov_b32_dpp v%d, v%d wave_shl:1 row_mask:0xf bank_mask:0xf" % (240 + i, 224 + i))
for c in range(4):
    b = 128 + 8 * c
    for i in range(8): a("v_cvt_pk_bf16_f32 v%d, v%d, v%d" % (b + i, 224 + 15 - 2 * i + c, 224 + 14 - 2 * i + c))
    a("ds_write_b128 v85, %s offset:%d\nds_write_b128 v85, %s offset:%d" % (vr(b, 4), KCOPY * c, vr(b + 4, 4), KCOPY * c + 16))
a("s_cbranch_scc0 L_nopad")
a("s_mov_b64 exec, 1")
a("v_cvt_pk_bf16_f32 v161, v224, 0\nv_cvt_pk_bf16_f32 v162, v225, v224\nv_cvt_pk_bf16_f32 v160, v226, v225")
a("ds_write_b32 v85, v161 offset:%d\nds_write_b32 v85, v162 offset:%d\nds_write_b64 v85, v[160:161] offset:%d" % (KCOPY + 32, 2 * KCOPY + 32, 3 * KCOPY + 32))
a("s_mov_b64 exec, -1\nL_nopad:")
stamp()
if not G1EARLY: gather1(a, True)
a("s_lshl_b32 s%d, s%d, 3\ns_lshr_b32 s%d, s2, 7\ns_lshl_b32 s%d, s%d, 2\ns_add_u32 s%d, s%d, s%d\ns_add_u32 s%d, s%d, s%d" % (T2, sXCD, T3, T3, T3, T2, T2, T3, T2, T2, sV))
a("s_lshl_b32 s%d, s%d, 15\ns_add_u32 s%d, s%d, 0x%x" % (sH2RD, T2, sH2RD, sH2RD, H2))
a("s_and_b32 s%d, s%d, 15\ns_lshl_b32 s%d, s%d, 4\ns_add_u32 s%d, s%d, s%d\ns_mul_i32 s%d, s%d, 7168\ns_add_u32 s%d, s%d, 0x%x" % (T3, sIDX, T2, T2, T2, T2, T3, sH3OWN, T2, sH3OWN, sH3OWN, H3))
a("s_and_b32 s%d, s%d, 7\ns_lshl_b32 s%d, s%d, 18\ns_mul_i32 s%d, s%d, %d\ns_add_u32 s%d, s%d, s%d\ns_add_u32 s%d, s%d, 0x%x" % (T3, sIDX, sW2RD, T3, T2, sV, 28 * 2048, sW2RD, sW2RD, T2, sW2RD, sW2RD, W2F))
a("s_lshl_b32 s%d, s%d, 2\ns_lshr_b32 s63, s2, 6\ns_add_u32 s63, s63, s%d\ns_lshl_b32 s63, s63, 1" % (T2, sXCD, T2))
a("s_lshl_b32 s%d, s63, 2\ns_add_u32 s%d, s%d, s%d\ns_mul_i32 s%d, s%d, %d\ns_add_u32 s%d, s%d, 0x%x" % (T2, T2, T2, sV, sH3RD, T2, 28 * 1024, sH3RD, sH3RD, H3))
a("v_min_u32 v6, 55, v1\nv_lshrrev_b32 v7, 1, v6\nv_and_b32 v6, 1, v6\nv_lshlrev_b32 v7, 9, v7\nv_lshl_add_u32 v88, v6, 7, v7")
a("s_mul_i32 s%d, s%d, %d\ns_lshr_b32 s68, s%d, 2\ns_lshl_b32 s68, s68, 8\ns_add_u32 s%d, s%d, s68\ns_bfe_u32 s68, s%d, 0x10001\ns_lshl_b32 s68, s68, 6\ns_add_u32 s%d, s%d, s68\ns_add_u32 s68, s%d, 0x%x" % (T2, sV, 28 * 512, T3, T2, T2, T3, T2, T2, T2, F2))
vm.wait("g1")
check1(a)
a("s_cbranch_vccnz R_g1\nB_g1:")
ool("R_g1:"); gather1(ool, False); ool("s_waitcnt vmcnt(0)"); check1(ool); ool("s_cbranch_vccz B_g1"); budget_loop(ool, "R_g1"); ool("s_branch B_g1")
vmem("buffer_load_dword v89, v88, %s, s68 offen sc1" % sr(WS, 4), "f2")
stamp()
a("v_lshlrev_b32 v9, 3, v0\nv_add_u32 v9, %d, v9" % (UB + 480))
for jp in range(2):
    for j2 in range(2):
        j = 2 * jp + j2
        X, S = 96 + 4 * j, 112 + 4 * j
        a("v_lshlrev_b32 v6, 16, v%d\nv_and_b32 v7, 0xffff0000, v%d" % (S, S))
        for rr in range(2):
            xr = 10 + 8 * jp + 4 * j2 + 2 * rr
            ur = 36 + 4 * j2 + 2 * rr
            a("v_lshlrev_b32 v%d, 16, v%d\nv_and_b32 v%d, 0xffff0000, v%d" % (xr, X + rr, xr + 1, X + rr))
            a("v_pk_add_f32 %s, %s, v[6:7] op_sel:[0,%d] op_sel_hi:[1,%d] neg_lo:[0,1] neg_hi:[0,1]" % (vr(ur, 2), vr(xr, 2), rr, rr))
            if rr == 0: a("v_pk_mul_f32 %s, %s, %s op_sel:[0,1] op_sel_hi:[1,1]" % (vr(ur, 2), vr(ur, 2), vr(S, 2)))
            else: a("v_pk_mul_f32 %s, %s, %s op_sel:[0,0] op_sel_hi:[1,0]" % (vr(ur, 2), vr(ur, 2), vr(S + 2, 2)))
    for ch in range(2):
        d = 44 + 4 * jp + 2 * ch
        a("v_cvt_pk_bf16_f32 v%d, v%d, v%d\nv_cvt_pk_bf16_f32 v%d, v%d, v%d" % (d, 36 + ch, 38 + ch, d + 1, 40 + ch, 42 + ch))
        a("ds_write_b64 v9, %s offset:%d" % (vr(d, 2), 2048 * jp + UCH * ch))
a("s_waitcnt lgkmcnt(0)\ns_barrier")
stamp()
a("s_or_b32 s%d, s2, s%d\ns_cbranch_scc1 L_noep" % (T0, sV))
a("v_mov_b32 v9, 0\ns_mov_b64 exec, 1")
a("buffer_store_dword v66, v9, %s, 0 offen sc1" % sr(WS, 4))
a("s_mov_b64 exec, -1\nL_noep:")

ABUF = (128, 192); BBUF = (160, 96)
def conv_reads(i):
    out = []
    for j in range(8):
        A, B = ABUF[i & 1] + 4 * j, BBUF[i & 1] + 4 * j
        off = 512 * (7 - j) + 64 * (3 - i)
        out.append(("ds_read_b64 %s, v86 offset:%d" % (vr(A, 2), off), ("c", i, j)))
        out.append(("ds_read_b64 %s, v86 offset:%d" % (vr(A + 2, 2), off + 8), ("c", i, j)))
        out.append(("ds_read_b128 %s, v87 offset:%d" % (vr(B, 4), 512 * j + 64 * (3 - i)), ("c", i, j)))
    return out
w2_i = [0]
def w2_load():
    i = w2_i[0]
    if i >= 56: return False
    if i and i % 4 == 0: a("s_add_u32 s%d, s%d, 0x1000" % (sW2RD, sW2RD))
    vmem("buffer_load_dwordx4 %s, v3, %s, s%d offen offset:%d sc1" % (ar(4 * i, 4), sr(WS, 4), sW2RD, 1024 * (i % 4)), "w2f")
    w2_i[0] += 1
    return True
clr_i = [0]
def clr3():
    i = clr_i[0]
    if i == 4: a("s_add_u32 s%d, s%d, 0x1000" % (T3, sH3OWN))
    vmem("buffer_store_dwordx4 v[32:35], v3, %s, s%d offen offset:%d sc1" % (sr(WS, 4), sH3OWN if i < 4 else T3, 1024 * (i % 4)), "clr3")
    clr_i[0] += 1
side = []
side += [lambda: w1_dma(1)] * (28 - dma_i[0])
side += [clr3] * 7
def f2check():
    vm.wait("f2")
    a("v_cmp_ne_u32 vcc, s%d, v89\ns_cbranch_vccnz R_f2\nB_f2:" % sTAG)
    ool("R_f2:\nbuffer_load_dword v89, v88, %s, s68 offen sc1\ns_waitcnt vmcnt(0)\nv_cmp_ne_u32 vcc, s%d, v89\ns_cbranch_vccz B_f2" % (sr(WS, 4), sTAG))
    budget_loop(ool, "R_f2"); ool("s_branch B_f2")
side += [f2check] + [w2_load] * OI("w2a", 16)
first = set()
pend = conv_reads(0)
for r_, t_ in pend[:12]: ds(r_, t_)
pend = pend[12:]
nmf = 0
SIDE_EVERY = max(1, 140 // max(1, len(side)))
for i in range(4):
    nxt = conv_reads(i + 1) if i < 3 else []
    pend = pend + nxt
    for mx in range(8):
        pairs = [(mx, m) for m in range(mx + 1) if mx + m <= 7] + [(j, mx) for j in range(mx) if j + mx <= 7]
        need = ("c", i, mx)
        while any(t == need for _, t in pend):
            r_, t_ = pend.pop(0); ds(r_, t_)
        if lg.has(need): lg.wait(need)
        for j, m in pairs:
            n = j + m
            acc = vr(224 + 4 * n, 4)
            a("v_mfma_f32_16x16x32_bf16 %s, %s, %s, %s" % (acc, vr(ABUF[i & 1] + 4 * j, 4), vr(BBUF[i & 1] + 4 * m, 4), acc if n in first else "0"))
            first.add(n); nmf += 1
            if pend:
                r_, t_ = pend.pop(0); ds(r_, t_)
            if side and nmf % SIDE_EVERY == 0: side.pop(0)()
while side: side.pop(0)()
stamp()
a("v_and_b32 v6, 15, v1\nv_lshrrev_b32 v7, 4, v1\nv_lshl_add_u32 v8, v7, 2, v6\nv_and_b32 v8, 15, v8\nv_lshl_add_u32 v8, v7, 4, v8")
a("s_lshl_b32 s%d, s%d, 13\ns_add_u32 s%d, s%d, %d\nv_lshl_add_u32 v8, v8, 4, s%d" % (T0, sV, T0, T0, EX, T0))
a("v_lshrrev_b32 v6, 2, v1\nv_and_b32 v7, 3, v1\nv_lshl_add_u32 v9, v7, 2, v6\nv_and_b32 v9, 15, v9\nv_lshl_add_u32 v9, v7, 4, v9")
a("s_add_u32 s%d, s%d, %d\nv_lshl_add_u32 v9, v9, 4, s%d" % (T0, sM0W, EX, T0))
a("s_barrier")
for n in range(8): a("ds_write_b128 v8, %s offset:%d" % (vr(224 + 4 * n, 4), 1024 * n))
vm.wait("clr3")
a("s_waitcnt lgkmcnt(0)\ns_barrier")
for jp in range(2):
    for sw in range(4): ds("ds_read_b128 %s, v9 offset:%d" % (vr(128 + 16 * jp + 4 * sw, 4), 8192 * sw + 4096 * jp), ("e", jp))
a("s_add_u32 s%d, s3, 0x100000" % T1)
for jp in range(2):
    lg.wait(("e", jp))
    b = 128 + 16 * jp
    for r in range(4):
        xr = 10 + 8 * jp + 2 * r
        a("v_add_f32 v%d, v%d, v%d\nv_add_f32 v%d, v%d, v%d" % (xr, xr, b + r, xr + 1, xr + 1, b + 8 + r))
        a("v_add_f32 v%d, v%d, v%d\nv_add_f32 v%d, v%d, v%d" % (xr, xr, b + 4 + r, xr + 1, xr + 1, b + 12 + r))
        a("v_cvt_pk_bf16_f32 v%d, v%d, v%d" % (36 + 4 * jp + r, xr, xr + 1))
    vmem("buffer_store_dwordx4 %s, v60, %s, s%d offen sc1" % (vr(36 + 4 * jp, 4), sr(WS, 4), 3 if jp == 0 else T1), "hs")
stamp()

a("v_and_b32 v6, 15, v1\nv_lshrrev_b32 v7, 4, v1")
a("v_lshrrev_b32 v8, 2, v1\nv_mul_u32_u24 v8, 224, v8\nv_and_b32 v9, 3, v1\nv_lshl_add_u32 v44, v9, 3, v8\nv_add_u32 v45, %d, v44" % (8 * 7168))
a("v_lshlrev_b32 v46, 8, v7\nv_lshl_add_u32 v46, v6, 3, v46")
a("v_lshlrev_b32 v47, 4, v7\nv_add_u32 v47, %d, v47" % CB)
a("v_lshrrev_b32 v8, 2, v6\nv_lshl_add_u32 v8, v8, 4, v6\nv_lshlrev_b32 v48, 2, v8")
a("v_and_b32 v49, 3, v1")
for i in range(4): a("v_mov_b32 v%d, 0x3f803f80" % (4 + i))
a("s_lshl_b32 s%d, s%d, 6\nv_add_u32 v50, s%d, v44\nv_add_u32 v51, %d, v50" % (T0, sV, T0, 8 * 7168))
def csread(s):
    b = 200 + 8 * (s % 4)
    for tt in range(2):
        for hf in range(2):
            ds("ds_read_b64_tr_b16 %s, v%d offset:%d" % (vr(b + 4 * tt + 2 * hf, 2), 50 + s // 8, (s % 8) * 7168 + 3584 * hf + 32 * tt), ("cs", s))
for s in range(3): csread(s)
for s in range(16):
    if s + 3 < 16: csread(s + 3)
    lg.wait(("cs", s))
    b = 200 + 8 * (s % 4)
    for tt in range(2):
        a("v_mfma_f32_16x16x32_bf16 %s, %s, v[4:7], %s" % (vr(184 + 4 * tt, 4), vr(b + 4 * tt, 4), vr(184 + 4 * tt, 4) if s else "0"))
LA = OI("la1", 5)
HOFF = (0, 1024, 128, 1152)
def hbuf(s): return 64 + 8 * (s % 8)
def hload(o, s, i, track):
    if i == 0 and s % 2 == 0 and track: a("s_add_u32 s%d, s%d, %d" % (T2, sH2RD, 2048 * s))
    if not track and i == 0: o("s_add_u32 s%d, s%d, %d" % (T0, sH2RD, 2048 * (s & ~1)))
    o("buffer_load_dwordx2 %s, v46, %s, s%d offen offset:%d sc1" % (vr(hbuf(s) + 2 * i, 2), sr(WS, 4), T2 if track else T0, HOFF[i] + 2048 * (s & 1)))
    if track: vm.issue(("h", s))
def hcheck(o, s):
    b = hbuf(s)
    o("v_max3_u32 v8, v%d, v%d, v%d\nv_max3_u32 v9, v%d, v%d, v%d\nv_max3_u32 v8, v%d, v%d, v8\nv_max_u32 v8, v8, v9\nv_cmp_eq_u32 vcc, -1, v8" % (b, b + 1, b + 2, b + 3, b + 4, b + 5, b + 6, b + 7))
def hretry(s):
    ool("R_h%d:" % s)
    for i in range(4): hload(ool, s, i, False)
    ool("s_waitcnt vmcnt(0)"); hcheck(ool, s); ool("s_cbranch_vccz B_h%d" % s); budget_loop(ool, "R_h%d" % s); ool("s_branch B_h%d" % s)
def wbuf(s): return 200 + 28 * (s & 1)
def wreads(s):
    return [("ds_read_b64_tr_b16 %s, v%d offset:%d" % (vr(wbuf(s) + 4 * T + 2 * hf, 2), 44 + s // 8, (s % 8) * 7168 + 3584 * hf + 32 * T), ("w", s)) for T in range(7) for hf in range(2)]
for s in range(LA):
    for i in range(4): hload(a, s, i, True)
a("s_lshl_b32 s%d, s%d, 7\nv_add_u32 v8, s%d, v47" % (T0, sV, T0))
a("s_mov_b32 exec_lo, 0x00010001\ns_mov_b32 exec_hi, 0x00010001")
a("ds_write_b128 v8, v[184:187]\nds_write_b128 v8, v[188:191] offset:64")
a("s_mov_b64 exec, -1\ns_waitcnt lgkmcnt(0)\ns_barrier")
for r_, t_ in wreads(0): ds(r_, t_)
stamp()
def hprep(s):
    b = hbuf(s)
    hretry(s)
    return [lambda: vm.wait(("h", s)), lambda: hcheck(a, s), lambda: a("s_cbranch_vccnz R_h%d\nB_h%d:" % (s, s)),
            lambda: a("v_swap_b32 v%d, v%d" % (b + 1, b + 4)), lambda: a("v_swap_b32 v%d, v%d" % (b + 3, b + 6))]
for f in hprep(0): f()
stamp()
for s in range(16):
    b = hbuf(s)
    mf = []
    for tau in range(2):
        mf.append("v_mfma_f32_16x16x32_bf16 %s, v[4:7], %s, %s" % (vr(184 + 4 * tau, 4), vr(b + 4 * tau, 4), vr(184 + 4 * tau, 4) if s else "0"))
        mf.append("v_mfma_f32_16x16x32_bf16 %s, %s, %s, %s" % (vr(192 + 4 * tau, 4), vr(b + 4 * tau, 4), vr(b + 4 * tau, 4), vr(192 + 4 * tau, 4) if s else "0"))
    for T in range(7):
        for tau in range(2):
            acc = vr(128 + 8 * T + 4 * tau, 4)
            mf.append("v_mfma_f32_16x16x32_bf16 %s, %s, %s, %s" % (acc, vr(wbuf(s) + 4 * T, 4), vr(b + 4 * tau, 4), acc if s else "0"))
    rd = wreads(s + 1) if s < 15 else []
    prep = hprep(s + 1) if s < 15 else []
    for k, m in enumerate(mf):
        if k == 4 and lg.has(("w", s)): lg.wait(("w", s))
        a(m)
        if rd: r_, t_ = rd.pop(0); ds(r_, t_)
        if k in (1, 3, 5, 7) and s + LA < 16: hload(a, s + LA, (k - 1) // 2, True)
        if k in (2, 6) and s + LA >= 16 and w2_i[0] < OI("w2a", 16) + OI("w2b", 8): w2_load()
        if prep:
            if k == 10: prep.pop(0)(); prep.pop(0)()
            elif k in (13, 14, 15): prep.pop(0)()
stamp()
a("v_cmp_eq_u32 s[%d:%d], 1, v49\nv_cmp_eq_u32 s[%d:%d], 2, v49\nv_cmp_eq_u32 vcc, 3, v49" % (T0, T1, T2, T3))
for tau in range(2):
    q = 192 + 4 * tau
    a("v_cndmask_b32 v%d, v%d, v%d, s[%d:%d]\nv_cndmask_b32 v%d, v%d, v%d, s[%d:%d]\nv_cndmask_b32 v%d, v%d, v%d, vcc" % (q, q, q + 1, T0, T1, q, q, q + 2, T2, T3, q, q, q + 3))
    ds("ds_bpermute_b32 v%d, v48, v%d" % (q + 1, q), "bp")
def cbread(T):
    b = 200 + 8 * (T % 2)
    ds("ds_read_b128 %s, v47 offset:%d" % (vr(b, 4), 64 * T), ("cb", T))
    ds("ds_read_b128 %s, v47 offset:%d" % (vr(b + 4, 4), 512 + 64 * T), ("cb", T))
cbread(0)
KG = 0.7978845608028654
a("v_mov_b32 v14, 0x%x\nv_mov_b32 v15, 0x%x\nv_mov_b32 v16, 1.0\nv_mov_b32 v17, 1.0" % (f2u(-2 * KG * LOG2E * 0.044715), f2u(-2 * KG * LOG2E)))
lg.wait("bp")
for tau in range(2):
    m_, q = 184 + 4 * tau, 193 + 4 * tau
    R = 10 + 2 * tau
    a("v_mul_f32 v%d, 0x%x, v%d\nv_mul_f32 v%d, 0x%x, v%d" % (m_, f2u(1 / 512), m_, q, f2u(1 / 512), q))
    a("v_fma_f32 v%d, -v%d, v%d, v%d\nv_max_f32 v%d, 0, v%d" % (q, m_, m_, q, q, q))
    a("v_add_f32 v8, 0x%x, v%d\nv_fmac_f32 v%d, 0x%x, v8\nv_rsq_f32 v%d, v%d" % (f2u(1e-5), q, q, f2u(1e-5), R, q))
    a("v_mul_f32 v%d, v%d, v%d" % (R + 1, R, m_))
a("s_add_u32 s%d, s%d, 0x1000" % (T3, sH3OWN))
for T in range(7):
    if T < 6: cbread(T + 1)
    lg.wait(("cb", T))
    cb = 200 + 8 * (T % 2)
    o = 216 + 4 * (T % 2)
    prs = [(tau, h) for tau in range(2) for h in range(2)]
    Z = lambda tau, h: 128 + 8 * T + 4 * tau + 2 * h
    E = lambda tau, h: 224 + 4 * tau + 2 * h
    for tau, h in prs: a("v_pk_fma_f32 %s, %s, %s, %s op_sel:[0,1,0] op_sel_hi:[1,1,1] neg_lo:[1,0,0] neg_hi:[1,0,0]" % (vr(E(tau, h), 2), vr(cb + 2 * h, 2), vr(10 + 2 * tau, 2), vr(cb + 4 + 2 * h, 2)))
    for tau, h in prs: a("v_pk_fma_f32 %s, %s, %s, %s op_sel_hi:[1,0,1]" % (vr(Z(tau, h), 2), vr(Z(tau, h), 2), vr(10 + 2 * tau, 2), vr(E(tau, h), 2)))
    for tau, h in prs: a("v_pk_mul_f32 %s, %s, %s" % (vr(E(tau, h), 2), vr(Z(tau, h), 2), vr(Z(tau, h), 2)))
    for tau, h in prs: a("v_pk_fma_f32 %s, %s, v[14:15], v[14:15] op_sel:[0,0,1] op_sel_hi:[1,0,1]" % (vr(E(tau, h), 2), vr(E(tau, h), 2)))
    for tau, h in prs: a("v_pk_mul_f32 %s, %s, %s" % (vr(E(tau, h), 2), vr(E(tau, h), 2), vr(Z(tau, h), 2)))
    for k in range(8): a("v_exp_f32 v%d, v%d" % (224 + k, 224 + k))
    for _ in range(2): w2_load()
    for tau, h in prs: a("v_pk_add_f32 %s, %s, v[16:17]" % (vr(E(tau, h), 2), vr(E(tau, h), 2)))
    for k in range(8): a("v_rcp_f32 v%d, v%d" % (224 + k, 224 + k))
    for _ in range(3): w2_load()
    for tau, h in prs: a("v_pk_mul_f32 %s, %s, %s" % (vr(E(tau, h), 2), vr(E(tau, h), 2), vr(Z(tau, h), 2)))
    for tau, h in prs: a("v_cvt_pk_bf16_f32 v%d, v%d, v%d" % (o + 2 * tau + h, E(tau, h), E(tau, h) + 1))
    a("v_permlane16_swap_b32 v%d, v%d\nv_permlane16_swap_b32 v%d, v%d" % (o, o + 2, o + 1, o + 3))
    vmem("buffer_store_dwordx4 %s, v3, %s, s%d offen offset:%d sc1" % (vr(o, 4), sr(WS, 4), sH3OWN if T < 4 else T3, 1024 * (T % 4)), "h1s")
while w2_load(): pass
stamp()

LA2 = OI("la2", 4)
GB = (192, 208, 224, 240, 64, 80, 96, 112)
def gbuf(g): return GB[g % 8]
def goff(g): return (g // 7) * 112 * 1024 + (g % 7) * 4096
def gload(o, g, i, track):
    if i == 0: o("s_add_u32 s%d, s%d, %d" % (T2 if track else T0, sH3RD, goff(g)))
    o("buffer_load_dwordx4 %s, v3, %s, s%d offen offset:%d sc1" % (vr(gbuf(g) + 4 * i, 4), sr(WS, 4), T2 if track else T0, 1024 * i))
    if track: vm.issue(("g", g))
def gcheck(o, g):
    b = gbuf(g)
    o("v_max3_u32 v8, v%d, v%d, v%d\nv_max3_u32 v9, v%d, v%d, v%d" % (b, b + 3, b + 4, b + 7, b + 8, b + 11))
    o("v_max3_u32 v8, v%d, v%d, v8\nv_max_u32 v8, v8, v9\nv_cmp_eq_u32 vcc, -1, v8" % (b + 12, b + 15))
def gprep(g):
    ool("R_q%d:" % g)
    for i in range(4): gload(ool, g, i, False)
    ool("s_waitcnt vmcnt(0)"); gcheck(ool, g); ool("s_cbranch_vccz B_q%d" % g); budget_loop(ool, "R_q%d" % g); ool("s_branch B_q%d" % g)
    return [lambda: (vm.wait(("g", g)), gcheck(a, g)), lambda: a("s_cbranch_vccnz R_q%d\nB_q%d:" % (g, g))]
a("v_lshrrev_b32 v6, 5, v1\nv_lshl_add_u32 v7, v6, 2, v1\nv_and_b32 v8, 15, v7\nv_add_u32 v7, 8, v7\nv_and_b32 v7, 15, v7\nv_and_b32 v6, 48, v1")
a("s_lshl_b32 s%d, s%d, 13" % (T0, sV))
a("v_add_u32 v8, v8, v6\nv_add_u32 v7, v7, v6\nv_lshl_add_u32 v44, v8, 4, s%d\nv_lshl_add_u32 v45, v7, 4, s%d" % (T0, T0))
a("v_lshrrev_b32 v6, 3, v1\nv_and_b32 v7, 7, v1\ns_lshl_b32 s%d, s%d, 3\nv_add_u32 v6, s%d, v6" % (T0, sV, T0))
a("v_lshl_add_u32 v8, v7, 2, v6\nv_and_b32 v8, 15, v8\nv_and_b32 v9, 16, v6\nv_add_u32 v8, v8, v9\nv_lshl_add_u32 v8, v7, 5, v8\nv_lshlrev_b32 v46, 4, v8")
a("v_and_b32 v8, 15, v6\nv_lshrrev_b32 v9, 4, v6\nv_lshl_add_u32 v8, v8, 1, v9")
a("v_lshlrev_b32 v47, 10, v8\nv_lshl_add_u32 v47, v7, 4, v47")
a("v_lshlrev_b32 v48, 2, v8\nv_lshl_add_u32 v48, v7, 9, v48")
a("s_and_b32 s%d, s%d, 7\ns_lshl_b32 s%d, s%d, 7\nv_lshl_add_u32 v9, v7, 4, s%d" % (T0, sIDX, T1, T0, T1))
vmem("global_load_dwordx4 v[20:23], v9, s[58:59]", "b2")
a("s_lshl_b32 s61, s63, 15\ns_add_u32 s62, s61, s%d" % T1)
a("s_lshl_b32 s%d, s%d, 12\ns_add_u32 s61, s61, s%d\ns_add_u32 s61, s61, 0x%x" % (T0, T0, T0, H2))
for g in range(LA2):
    for i in range(4): gload(a, g, i, True)
for f in gprep(0): f()
stamp()
RB = (KC, 0)
def red_write(th):
    out = []
    for par in range(2):
        for q in range(4):
            src = 128 + 32 * th + 16 * par + 4 * q
            if th == 0: out.append("ds_write_b128 v%d, %s offset:%d" % (50 + (q & 1), vr(src, 4), (par * 4 + q) * 1024))
            else: out.append("ds_write_b128 v%d, %s offset:%d" % (44 + (q & 1), vr(src, 4), (par * 4 + q) * 1024))
    return out
a("v_add_u32 v50, %d, v44\nv_add_u32 v51, %d, v45\nv_add_u32 v52, %d, v46" % (KC, KC, KC))
def res_load(th):
    if th: a("s_add_u32 s61, s61, 0x8000")
    for k in range(4): vmem("buffer_load_dword v%d, v48, %s, s61 offen offset:%d sc1" % (24 + 4 * th + k, sr(WS, 4), 128 * k), ("res", th))
def red_read(th):
    for sw in range(4):
        for par in range(2):
            ds("ds_read_b128 %s, v%d offset:%d" % (vr(128 + 8 * sw + 4 * par, 4), 52 if th == 0 else 46, 8192 * sw + 4096 * par), ("rr", th))
def red_math(th):
    ops = []
    for k in range(4):
        lo, hi = 128 + k, 132 + k
        ops.append("v_lshlrev_b32 v6, 16, v%d\nv_and_b32 v7, 0xffff0000, v%d" % (24 + 4 * th + k, 24 + 4 * th + k))
        ops.append("v_add_f32 v%d, v%d, v%d\nv_add_f32 v%d, v%d, v%d" % (lo, lo, lo + 8, hi, hi, hi + 8))
        ops.append("v_add_f32 v%d, v%d, v%d\nv_add_f32 v%d, v%d, v%d" % (lo + 16, lo + 16, lo + 24, hi + 16, hi + 16, hi + 24))
        ops.append("v_add_f32 v6, v6, v%d\nv_add_f32 v7, v7, v%d" % (12 + 2 * k, 13 + 2 * k))
        ops.append("v_add_f32 v%d, v%d, v%d\nv_add_f32 v%d, v%d, v%d" % (lo, lo, lo + 16, hi, hi, hi + 16))
        ops.append("v_add_f32 v6, v6, v%d\nv_add_f32 v7, v7, v%d" % (lo, hi))
        ops.append("v_cvt_pk_bf16_f32 v%d, v6, v7" % (36 + 4 * th + k))
    return ops
OUTF = opt.get("outf", "")
def out_store(th):
    if th: a("s_add_u32 s62, s62, 0x8000")
    vmem("buffer_store_dwordx4 %s, v47, %s, s62 offen %s" % (vr(36 + 4 * th, 4), sr(OUTS, 4), OUTF), "out")
extra = []
for g in range(14):
    th, gl = g // 7, g % 7
    prep = gprep(g + 1) if g < 13 else []
    if g == 0:
        extra = [lambda: res_load(0)] + [lambda k=k: a("v_lshlrev_b32 v%d, 16, v%d\nv_and_b32 v%d, 0xffff0000, v%d" % (12 + 2 * k, 20 + k, 13 + 2 * k, 20 + k)) for k in range(4)]
    if g == 7: extra = [lambda: res_load(1), None] + [lambda s_=s_: ds(s_, "rw") for s_ in red_write(0)]
    if g == 9: extra = [lambda: (lg.drain(), a("s_barrier"), red_read(0))]
    if g == 10: extra = [lambda: (lg.wait(("rr", 0)), vm.has(("res", 0)) and vm.wait(("res", 0)))] + [lambda s_=s_: a(s_) for s_ in red_math(0)] + [lambda: out_store(0)]
    k = 0
    for i in range(4):
        for par in range(2):
            acc = vr(128 + 32 * th + 16 * par, 16)
            ks = 4 * gl + i
            a("v_mfma_f32_32x32x16_bf16 %s, %s, %s, %s" % (acc, ar(8 * ks + 4 * par, 4), vr(gbuf(g) + 4 * i, 4), acc if ks else "0"))
            if k % 2 == 0 and g + LA2 < 14: gload(a, g + LA2, k // 2, True)
            for _ in range(2):
                if extra:
                    e_ = extra.pop(0)
                    if e_: e_()
            if prep and k in (6, 7): prep.pop(0)()
            k += 1
assert not extra
stamp()
for s_ in red_write(1): ds(s_, "rw")
lg.drain(); a("s_barrier")
red_read(1)
lg.wait(("rr", 1))
if vm.has(("res", 1)): vm.wait(("res", 1))
for s_ in red_math(1): a(s_)
out_store(1)
if STAMPS:
    vm.drain(); stamp()
    NST = nst[0]
    a("s_mul_i32 s%d, s2, %d\ns_add_u32 s%d, s%d, 0x%x" % (T0, 16 * 8, T0, T0, STAMP_OFF))
    a("s_cmp_lg_u32 s%d, %d\ns_cbranch_scc1 L_end\ns_mov_b64 exec, 1\nv_mov_b32 v1, s%d" % (sV, OI("stwave", 0), T0))
    for j in range(16):
        a("v_mov_b32 v2, s%d\nv_mov_b32 v3, s%d" % (sST + 2 * min(j, NST - 1), sST + 1 + 2 * min(j, NST - 1)))
        a("buffer_store_dwordx2 v[2:3], v1, %s, 0 offen offset:%d\ns_nop 1" % (sr(WS, 4), 8 * j))
a("L_end:\ns_endpgm\nL_code_end:")
lines, added = hazard.fix(a.l, verbose=OI("hv"))
lines2, added2 = hazard.fix(ool.l)
body = "\n".join(lines + lines2) + "\n"
open(sys.argv[1], "w").write(build_file([(name, 256, 256, LDS_BYTES)], body, [descriptor(name, 512, 256, 102)]))
print("wrote", sys.argv[1], "nops added", added, added2, "lds", LDS_BYTES, "stamps", nst[0])
```

```python
import sys, math, struct
from asmlib import *
import hazard

opt = dict(kv.split("=") for kv in sys.argv[2:])
OI = lambda k, d=0: int(opt.get(k, d))
STAMPS = OI("stamps")
def f2u(x): return struct.unpack("<I", struct.pack("<f", x))[0]

S1, F2, X1, H2, W2F, H3 = 0x4000, 0x10000, 0x100000, 0x500000, 0x700000, 0x900000
STAMP_OFF = 0x8000000
TROW = 544; TCH = 64 * TROW; TBL = 114688 - 2 * TCH
KC = 114688; KCOPY = 4160; KCH = 4 * KCOPY
UB = KC + 2 * KCH; UCH = 4576
CB = UB + 2 * UCH
LDS_BYTES = CB + 1024
EX = KC
WS, XS, W1S, W2S, OUTS = 4, 8, 12, 16, 20
sV, sXCD, sIDX, sTAG, sBUD = 24, 25, 26, 27, 28
sC, sZ = 29, 30
sH3OWN, sH2RD, sW1OFF, sM0W, sW2RD, sH3RD = 31, 32, 33, 34, 35, 60
sLDT, sDSK = 61, 62
T0, T1, T2, T3 = 64, 65, 66, 67
P = 36
sST = 70

a = Asm()
ool = Asm()
name = NAME + "_kernel"

class Ctr:
    def __init__(self, nm, mx): self.nm, self.mx, self.q = nm, mx, []
    def issue(self, tag): self.q.append(tag)
    def wait(self, tag):
        idx = max(i for i, t in enumerate(self.q) if t == tag)
        n = len(self.q) - 1 - idx
        a("s_waitcnt %s(%d)" % (self.nm, min(n, self.mx)))
        self.q = self.q[idx + 1:]
    def has(self, tag): return tag in self.q
    def drain(self):
        a("s_waitcnt %s(0)" % self.nm); self.q = []
vm = Ctr("vmcnt", 63); lg = Ctr("lgkmcnt", 15)
def vmem(s, tag): a(s); vm.issue(tag)
def ds(s, tag): a(s); lg.issue(tag)
nst = [0]
def stamp():
    if STAMPS and nst[0] < 16:
        if lg.q: lg.drain()
        a("s_memrealtime s[%d:%d]" % (sST + 2 * nst[0], sST + 1 + 2 * nst[0]))
        a("s_waitcnt lgkmcnt(0)")
        nst[0] += 1
def vr(b, n): return "v[%d:%d]" % (b, b + n - 1)
def ar(b, n): return "a[%d:%d]" % (b, b + n - 1)
def sr(b, n): return "s[%d:%d]" % (b, b + n - 1)
def budget_loop(o, lab):
    o("s_sub_u32 s%d, s%d, 1\ns_cbranch_scc0 %s\ns_mov_b32 s%d, 0" % (sBUD, sBUD, lab, sBUD))

kernel_begin(a, name)
if STAMPS:
    a("s_memrealtime s[%d:%d]" % (sST, sST + 1)); nst[0] = 1
a("s_cmp_lt_u32 s2, 256\ns_cbranch_scc1 L_go\ns_endpgm\nL_go:")
a("s_load_dwordx16 s[36:51], s[0:1], 0")
a("s_load_dwordx8 s[52:59], s[0:1], 64")
a("s_load_dwordx2 s[%d:%d], s[0:1], %d" % (OUTS, OUTS + 1, KA["out"]))
a("s_load_dwordx2 s[%d:%d], s[0:1], %d" % (WS, WS + 1, KA["ws"]))
a("s_getpc_b64 s[68:69]\nL_pc:")
a("v_lshlrev_b32 v4, 7, v0\nv_min_u32 v4, L_code_end-L_pc-4, v4")
vmem("global_load_dword v5, v4, s[68:69]", "code")
a("v_and_b32 v1, 63, v0\nv_lshrrev_b32 v4, 6, v0\nv_lshlrev_b32 v2, 4, v0\nv_lshlrev_b32 v3, 4, v1")
a("v_readfirstlane_b32 s%d, v4" % sV)
a("s_and_b32 s%d, s2, 7\ns_lshr_b32 s%d, s2, 3" % (sXCD, sIDX))
a("s_mov_b32 s%d, 0x40000" % sBUD)
a("s_lshr_b32 s%d, s%d, 1\ns_and_b32 s%d, s%d, 1" % (sC, sV, sZ, sV))
for s_, k in ((WS, "ws"), (XS, "x"), (W1S, "w1"), (W2S, "w2"), (OUTS, "out")):
    a("s_mov_b32 s%d, 0x%x\ns_mov_b32 s%d, 0x20000" % (s_ + 2, SZ[k], s_ + 3))
a("v_and_b32 v6, 7, v1\nv_lshrrev_b32 v7, 3, v1")
a("v_lshlrev_b32 v8, 12, v6\nv_lshl_add_u32 v8, v7, 4, v8")
a("v_lshlrev_b32 v59, 16, v7\nv_lshl_add_u32 v59, v6, 4, v59")
a("s_lshl_b32 s%d, s%d, 16\ns_lshl_b32 s%d, s%d, 15\ns_add_u32 s%d, s%d, s%d" % (T0, sIDX, T1, sZ, T0, T0, T1))
a("s_lshl_b32 s%d, s%d, 11\ns_add_u32 s%d, s%d, s%d\ns_lshl_b32 s%d, s%d, 7\ns_add_u32 s%d, s%d, s%d" % (T1, sC, T0, T0, T1, T1, sXCD, T0, T0, T1))
a("v_lshrrev_b32 v9, 5, v1\nv_and_b32 v6, 31, v1\nv_lshlrev_b32 v9, 10, v9\nv_lshl_add_u32 v9, v6, 4, v9")
a("s_lshr_b32 s%d, s2, 7\ns_lshl_b32 s%d, s%d, 20\ns_and_b32 s%d, s2, 63\ns_lshl_b32 s%d, s%d, 14\ns_add_u32 s%d, s%d, s%d" % (T1, T1, T1, T2, T2, T2, T1, T1, T2))
a("s_lshl_b32 s%d, s%d, 12\ns_add_u32 s%d, s%d, s%d\ns_bfe_u32 s%d, s2, 0x10006\ns_lshl_b32 s%d, s%d, 11\ns_add_u32 s%d, s%d, s%d" % (T2, sV, T1, T1, T2, T2, T2, T2, T1, T1, T2))
a("s_lshl_b32 s%d, s2, 9\nv_lshl_add_u32 v30, v0, 1, s%d" % (T2, T2))
a("v_lshrrev_b32 v6, 3, v0\nv_and_b32 v7, 7, v0\nv_lshlrev_b32 v60, 15, v6\nv_lshl_add_u32 v60, v7, 4, v60")
for i in range(4): a("v_mov_b32 v%d, -1" % (32 + i))
a("v_and_b32 v6, 127, v0\nv_lshrrev_b32 v7, 7, v0\nv_lshlrev_b32 v61, 13, v7\nv_lshl_add_u32 v61, v6, 2, v61")
a("v_lshrrev_b32 v62, 5, v6\nv_lshlrev_b32 v62, 18, v62\nv_and_b32 v6, 31, v6\nv_lshl_add_u32 v6, v7, 5, v6\nv_lshl_add_u32 v62, v6, 4, v62")
a("s_waitcnt lgkmcnt(0)")
a("s_mov_b64 s[%d:%d], s[36:37]\ns_mov_b64 s[%d:%d], s[52:53]\ns_mov_b64 s[%d:%d], s[56:57]" % (XS, XS + 1, W1S, W1S + 1, W2S, W2S + 1))
vmem("buffer_load_dwordx4 v[10:13], v8, %s, s%d offen" % (sr(XS, 4), T0), "xt")
vmem("buffer_load_dwordx4 v[14:17], v8, %s, s%d offen offset:1024" % (sr(XS, 4), T0), "xt")
vmem("buffer_load_dwordx4 v[18:21], v9, %s, s%d offen" % (sr(XS, 4), T1), "xs")
vmem("buffer_load_dwordx4 v[22:25], v9, %s, s%d offen offset:512" % (sr(XS, 4), T1), "xs")
a("s_lshl_b32 s%d, s2, 2" % T2)
a("s_load_dword s%d, s[%d:%d], 0x0" % (sTAG, WS, WS + 1))
a("s_load_dword s%d, s[46:47], s%d" % (sLDT, T2))
a("s_load_dword s%d, s[48:49], s%d" % (sDSK, T2))
for i in range(4):
    vmem("global_load_ushort v%d, v30, s[%d:%d]" % (26 + i, 38 + 2 * i, 39 + 2 * i), "par")
a("s_lshl_b32 s3, s2, 7\ns_add_u32 s3, s3, 0x%x\ns_add_u32 s%d, s3, 0x100000" % (H2, T0))
vmem("buffer_store_dwordx4 v[32:35], v60, %s, s3 offen sc1" % sr(WS, 4), "clr2")
vmem("buffer_store_dwordx4 v[32:35], v60, %s, s%d offen sc1" % (sr(WS, 4), T0), "clr2")
a("s_lshr_b32 s%d, s2, 1\ns_lshl_b32 s%d, s%d, 14\ns_and_b32 s%d, s2, 1\ns_lshl_b32 s%d, s%d, 9\ns_add_u32 s%d, s%d, s%d\ns_add_u32 s%d, s%d, 0x1000" % (T0, T0, T0, T1, T1, T1, T0, T0, T1, T1, T0))
for e in range(8):
    vmem("buffer_load_dword v%d, v61, %s, s%d offen offset:%d" % (36 + e, sr(W2S, 4), T0 if e < 4 else T1, 1024 * (e & 3)), "w2p")
a("s_and_b32 s%d, s%d, 15\ns_mul_i32 s%d, s%d, 224" % (T0, sIDX, sW1OFF, T0))
a("v_min_u32 v6, 111, v0\nv_lshl_add_u32 v6, v6, 1, s%d" % sW1OFF)
vmem("global_load_ushort v31, v6, s[54:55]", "b1")
a("s_movk_i32 s%d, 4682\ns_movk_i32 s%d, %d" % (T0, T1, 3584 - 224))
for i in range(7):
    a("v_add_u32 v6, %d, v0\nv_mul_u32_u24 v7, s%d, v6\nv_lshrrev_b32 v7, 16, v7" % (256 * i, T0))
    a("v_lshlrev_b32 v6, 4, v6\nv_mad_u32_u24 v%d, v7, s%d, v6" % (52 + i, T1))
a("s_lshl_b32 s%d, s%d, 10" % (sM0W, sV))
dma_i = [0]
def w1_dma(n):
    for _ in range(n):
        i = dma_i[0]
        if i >= 28: return
        a("s_add_u32 m0, s%d, %d" % (sM0W, 4096 * i))
        if i and i % 7 == 0: a("s_add_u32 s%d, s%d, %d" % (sW1OFF, sW1OFF, 128 * 3584))
        vmem("buffer_load_dwordx4 v%d, %s, s%d offen lds" % (52 + i % 7, sr(W1S, 4), sW1OFF), "w1")
        dma_i[0] += 1
w1_dma(OI("dma0", 7))

a("v_and_b32 v6, 15, v1\nv_lshrrev_b32 v7, 4, v1")
a("s_mov_b32 s%d, 0x3c393633\ns_mov_b32 s%d, 0x03030303\ns_cmp_eq_u32 s%d, 0" % (T0, T1, sZ))
a("s_cmov_b32 s%d, 0x2e292010" % T0)
a("s_cmov_b32 s%d, 0x02020100" % T1)
a("s_mul_i32 s%d, s%d, %d\ns_add_u32 s%d, s%d, %d" % (T2, sC, TCH, T2, T2, TBL))
a("v_lshrrev_b32 v8, 2, v6\nv_lshlrev_b32 v8, 3, v8")
a("v_bfe_u32 v9, s%d, v8, 8\nv_bfe_u32 v85, s%d, v8, 8\nv_sub_u32 v85, 0, v85" % (T0, T1))
a("v_and_b32 v8, 3, v6\nv_lshl_add_u32 v86, v7, 4, s%d" % T2)
a("s_movk_i32 s%d, %d" % (T3, TROW))
for q in range(4):
    a("v_add_u32 v87, %d, v8\nv_cvt_f32_u32 v87, v87\nv_ldexp_f32 v87, v87, v85\nv_rndne_f32 v87, v87\nv_cvt_u32_f32 v87, v87" % (4 * q))
    a("v_add_u32 v87, v87, v9\nv_mad_u32_u24 v%d, v87, s%d, v86" % (80 + q, T3))
a("v_mad_u32_u24 v84, v6, s%d, v86" % T3)
a("s_mul_i32 s%d, s%d, %d\ns_lshl_b32 s%d, s%d, 11\ns_sub_u32 s%d, s%d, s%d\ns_add_u32 s%d, s%d, %d" % (T0, sC, KCH, T1, sZ, T1, T0, T1, T1, T1, KC + 4064))
a("v_lshlrev_b32 v85, 5, v1\nv_sub_u32 v85, s%d, v85" % T1)
a("s_lshl_b32 s%d, s%d, 8\ns_sub_u32 s%d, s%d, s%d\ns_add_u32 s%d, s%d, %d" % (T1, sZ, T0, T0, T1, T0, T0, KC + 288))
a("v_add_u32 v8, 1, v6\nv_and_b32 v9, 3, v8\nv_and_b32 v8, 28, v8\nv_lshlrev_b32 v8, 1, v8")
a("s_movk_i32 s%d, %d" % (T3, KCOPY))
a("v_lshl_add_u32 v86, v7, 4, s%d\nv_sub_u32 v86, v86, v8\nv_mad_u32_u24 v86, v9, s%d, v86" % (T0, T3))
a("s_mul_i32 s%d, s%d, %d\ns_sub_u32 s%d, s%d, s%d\ns_add_u32 s%d, s%d, %d" % (T0, sC, UCH, T0, T0, T1, T0, T0, UB + 256))
a("v_lshl_add_u32 v87, v7, 4, s%d\nv_lshl_add_u32 v87, v6, 5, v87" % T0)
for i in range(4): a("v_mov_b32 v%d, 0" % (44 + i))
a("v_lshrrev_b32 v8, 5, v1\nv_and_b32 v9, 31, v1\nv_min_u32 v9, 29, v9\ns_movk_i32 s%d, %d" % (T3, UCH))
a("v_lshlrev_b32 v9, 4, v9\nv_mad_u32_u24 v8, v8, s%d, v9" % T3)
a("v_add_u32 v8, %d, v8" % UB)
a("ds_write_b128 v8, v[44:47]")
a("v_bfe_u32 v8, v1, 1, 3\nv_and_b32 v9, 1, v1\ns_movk_i32 s%d, %d\nv_lshlrev_b32 v9, 4, v9\nv_mad_u32_u24 v8, v8, s%d, v9" % (T3, KCOPY, T3))
a("v_add_u32 v8, %d, v8" % (KC + 4096))
a("ds_write_b128 v8, v[44:47]")
a("s_waitcnt lgkmcnt(0)")
a("s_add_u32 s%d, s%d, 0x9e3779b9" % (sTAG, sTAG))
for j in range(4): a("v_mov_b32 v%d, s%d\nv_mov_b32 v%d, s%d" % (66 + 4 * j, sTAG, 67 + 4 * j, sTAG))
a("s_lshl_b32 s%d, s%d, 19\ns_lshr_b32 s%d, s%d, 4\ns_lshl_b32 s%d, s%d, 13\ns_add_u32 s%d, s%d, s%d" % (T0, sXCD, T1, sIDX, T1, T1, T0, T0, T1))
a("s_lshl_b32 s%d, s%d, 12\ns_add_u32 s%d, s%d, s%d\ns_and_b32 s%d, s%d, 15\ns_lshl_b32 s%d, s%d, 8\ns_add_u32 s%d, s%d, s%d" % (T1, sC, T0, T0, T1, T1, sIDX, T1, T1, T0, T0, T1))
a("s_lshl_b32 s%d, s%d, 7\ns_add_u32 s%d, s%d, s%d\ns_add_u32 s%d, s%d, 0x%x" % (T1, sZ, T0, T0, T1, T0, T0, X1))
a("v_mov_b32 v6, 0\nv_mov_b32 v7, 0\nv_mov_b32 v8, 0x3f803f80")
stamp()
vm.wait("xt")
for j in range(4):
    a("v_mov_b32 v%d, v%d\nv_mov_b32 v%d, v%d" % (64 + 4 * j, 10 + j, 65 + 4 * j, 14 + j))
    vmem("buffer_store_dwordx4 %s, v59, %s, s%d offen sc1" % (vr(64 + 4 * j, 4), sr(WS, 4), T0), "x1s")
    if j < 3: a("s_add_u32 s%d, s%d, 0x4000" % (T0, T0))
vm.wait("xs")
for i in range(8):
    a("v_dot2c_f32_bf16 v6, v%d, v8\nv_dot2c_f32_bf16 v7, v%d, v%d" % (18 + i, 18 + i, 18 + i))
for ctl in ("quad_perm:[1,0,3,2] row_mask:0xf", "quad_perm:[2,3,0,1] row_mask:0xf", "row_half_mirror row_mask:0xf", "row_mirror row_mask:0xf", "row_bcast:15 row_mask:0xa"):
    a("v_add_f32_dpp v6, v6, v6 %s bank_mask:0xf\nv_add_f32_dpp v7, v7, v7 %s bank_mask:0xf" % (ctl, ctl))
a("v_mul_f32 v6, 0x%x, v6\nv_mul_f32 v7, 0x%x, v7" % (f2u(1 / 512), f2u(1 / 512)))
a("v_fma_f32 v7, -v6, v6, v7\nv_max_f32 v7, 0, v7\nv_add_f32 v7, 0x%x, v7\nv_rsq_f32 v20, v7" % f2u(1e-5))
a("v_readlane_b32 s%d, v6, 31\nv_mov_b32 v21, s%d\nv_readlane_b32 s%d, v20, 31" % (T0, sTAG, T1))
a("s_lshl_b32 s%d, s2, 2\ns_add_u32 s%d, s%d, s%d\ns_lshl_b32 s%d, s%d, 4\ns_add_u32 s%d, s%d, 0x%x" % (T2, T2, T2, sV, T2, T2, T2, T2, S1))
a("v_cvt_pk_bf16_f32 v18, s%d, v6\nv_mov_b32 v19, s%d\nv_mov_b32 v9, 0" % (T0, T1))
vm.wait("clr2")
a("s_mov_b32 exec_lo, 0\ns_mov_b32 exec_hi, 0x80000000")
vmem("buffer_store_dwordx4 v[18:21], v9, %s, s%d offen sc1" % (sr(WS, 4), T2), "s1s")
a("s_mov_b64 exec, -1")
stamp()
vm.wait("b1")
a("s_mov_b32 s%d, 0x05040100\ns_mov_b32 s%d, 0x07060302" % (T0, T1))
for i in range(4):
    a("v_perm_b32 v%d, v%d, v%d, s%d\nv_perm_b32 v%d, v%d, v%d, s%d" % (44 + i, 37 + 2 * i, 36 + 2 * i, T0, 48 + i, 37 + 2 * i, 36 + 2 * i, T1))
a("s_and_b32 s%d, s2, 1\ns_lshl_b32 s%d, s%d, 20\ns_lshr_b32 s%d, s2, 1\ns_lshl_b32 s%d, s%d, 11\ns_add_u32 s%d, s%d, s%d\ns_add_u32 s%d, s%d, 0x%x" % (T0, T0, T0, T1, T1, T1, T0, T0, T1, T0, T0, W2F))
vmem("buffer_store_dwordx4 v[44:47], v62, %s, s%d offen sc1" % (sr(WS, 4), T0), "w2s")
vmem("buffer_store_dwordx4 v[48:51], v62, %s, s%d offen offset:1024 sc1" % (sr(WS, 4), T0), "w2s")
a("v_lshlrev_b32 v31, 16, v31\nv_and_b32 v6, 127, v0\nv_lshlrev_b32 v6, 2, v6\nv_add_u32 v6, %d, v6" % (CB + 512))
a("v_cmp_gt_u32 vcc, 128, v0\ns_and_saveexec_b64 s[%d:%d], vcc" % (T0, T1))
a("ds_write_b32 v6, v31")
a("s_mov_b64 exec, -1")
w1_dma(OI("dma1", 0))

LOG2E = 1.4426950408889634
a("s_lshl_b32 s%d, s%d, 4\ns_lshr_b32 s%d, s%d, s%d\ns_lshl_b32 s%d, s%d, 16" % (T0, sC, sLDT, sLDT, T0, sLDT, sLDT))
a("s_lshr_b32 s%d, s%d, s%d\ns_lshl_b32 s%d, s%d, 16" % (sDSK, sDSK, T0, sDSK, sDSK))
a("v_mov_b32 v6, 0x%x\nv_mul_f32 v7, s%d, v6" % (f2u(LOG2E), sLDT))
for i in range(4): a("v_lshlrev_b32 v%d, 16, v%d" % (26 + i, 26 + i))
a("v_mul_f32 v26, v26, v6\nv_exp_f32 v7, v7\nv_exp_f32 v26, v26")
a("v_cvt_pk_bf16_f32 v7, v7, v26")
a("v_and_b32 v26, 0xffff0000, v7\nv_lshlrev_b32 v7, 16, v7")
a("v_mul_f32 v26, v26, v7\nv_mul_f32 v27, v27, v7")
a("v_mul_f32 v26, 0x%x, v26\nv_mul_f32 v27, 0.15915494, v27" % f2u(-LOG2E))
a("v_add_f32 v7, v7, v7\nv_mul_f32 v166, v28, v7\nv_mul_f32 v167, v29, -v7".replace("v_mul_f32 v167, v29, -v7", "v_mul_f32_e64 v167, v29, -v7"))
PW = lambda j: 132 + 2 * j
W256 = 132
for dst, p in ((PW(1), 1.0), (PW(16), 16.0), (W256, 256.0)):
    if p == 1.0: a("v_exp_f32 v8, v26\nv_fract_f32 v9, v27")
    else: a("v_mul_f32 v8, 0x%x, v26\nv_mul_f32 v9, 0x%x, v27\nv_exp_f32 v8, v8\nv_fract_f32 v9, v9" % (f2u(p), f2u(p)))
    a("v_cos_f32 v%d, v9\nv_sin_f32 v%d, v9" % (dst, dst + 1))
    a("v_pk_mul_f32 %s, %s, v[8:9] op_sel_hi:[1,0]" % (vr(dst, 2), vr(dst, 2)))
a("s_mul_i32 s%d, s%d, %d\ns_lshl_b32 s%d, s%d, 8\ns_add_u32 s%d, s%d, s%d\ns_add_u32 m0, s%d, %d" % (T0, sC, TCH, T1, sZ, T0, T0, T1, T0, TBL - 30720))
cv = [0]
def put(slot, reg):
    d = 180 + cv[0] % 8; cv[0] += 1
    if reg is None: a("v_mov_b32 v%d, 0x3f80" % d)
    else: a("v_cvt_pk_bf16_f32 v%d, v%d, v%d" % (d, reg, reg + 1))
    a("ds_write_addtid_b32 v%d offset:%d" % (d, slot * TROW + 30720))
def cmul(dst, z, w, tmp, conj=False):
    a("v_pk_mul_f32 %s, %s, %s op_sel_hi:[1,0]" % (vr(tmp, 2), vr(z, 2), vr(w, 2)))
    a("v_pk_fma_f32 %s, %s, %s, %s op_sel:[1,1,0] op_sel_hi:[0,1,1] %s:[1,0,0]" % (vr(dst, 2), vr(z, 2), vr(w, 2), vr(tmp, 2), "neg_hi" if conj else "neg_lo"))
put(16, None); put(17, PW(1)); put(0, 166)
for j in range(1, 16):
    gz, gd = (166, 168) if j % 2 else (168, 166)
    cmul(gd, gz, PW(16), 170, conj=True)
    if j >= 2: cmul(PW(j), PW(j - 1), PW(1), 172)
    put(j, gd)
    if j >= 2: put(16 + j, PW(j))
slot = 32
wm = W256
for m in range(1, 8):
    step = [1, 2, 4, 4, 8, 8, 8, 8][m]
    if m > 1:
        nw = 174 if m % 2 == 0 else 176
        cmul(nw, wm, W256, 170); wm = nw
    put(slot, wm); slot += 1
    for k, rho in enumerate(range(step, 17, step)):
        d, t = (178, 172) if k % 2 else (168, 166)
        cmul(d, wm, PW(rho), t); put(slot, d); slot += 1
assert slot == 63
vm.wait("w2s")
a("s_lshl_b32 s%d, s2, 2\ns_add_u32 s%d, s%d, s%d\ns_lshl_b32 s%d, s%d, 6\ns_add_u32 s%d, s%d, 0x%x" % (T2, T2, T2, sV, T2, T2, T2, T2, F2))
a("v_mov_b32 v9, 0\ns_mov_b64 exec, 1")
vmem("buffer_store_dword v66, v9, %s, s%d offen sc1" % (sr(WS, 4), T2), "f2s")
a("s_mov_b64 exec, -1")
a("s_waitcnt lgkmcnt(0)\ns_barrier")
stamp()
def gather1(o, track):
    o("s_lshl_b32 s%d, s2, 14\ns_add_u32 s%d, s%d, 0x%x\ns_mov_b32 s%d, 0x%x" % (T0, T0, T0, X1, T1, S1))
    for j in range(4):
        o("buffer_load_dwordx4 %s, v2, %s, s%d offen sc1" % (vr(96 + 4 * j, 4), sr(WS, 4), T0))
        o("buffer_load_dwordx4 %s, v2, %s, s%d offen sc1" % (vr(112 + 4 * j, 4), sr(WS, 4), T1))
        if track: vm.issue("g1"); vm.issue("g1")
        if j < 3: o("s_add_u32 s%d, s%d, 0x1000\ns_add_u32 s%d, s%d, 0x1000" % (T0, T0, T1, T1))
def check1(o):
    o("v_xor_b32 v6, s%d, v99" % sTAG)
    for j in range(1, 8): o("v_xor_b32 v7, s%d, v%d\nv_or_b32 v6, v6, v7" % (sTAG, 99 + 4 * j))
    o("v_cmp_ne_u32 vcc, 0, v6")
G1EARLY = OI("g1early", 1)
if G1EARLY: gather1(a, True)
def kread(s):
    b = 128 + 20 * (s % 3)
    ds("ds_read_b128 %s, v84 offset:%d" % (vr(b, 4), 64 * s), ("k", s))
    for q in range(4): ds("ds_read_b128 %s, v%d offset:%d" % (vr(b + 4 + 4 * q, 4), 80 + q, 64 * s), ("k", s))
kread(0); kread(1)
for s in range(8):
    if s + 2 < 8: kread(s + 2)
    lg.wait(("k", s))
    b = 128 + 20 * (s % 3)
    for q in range(4):
        a("v_mfma_f32_16x16x32_bf16 %s, %s, %s, %s" % (vr(224 + 4 * q, 4), vr(b + 4 + 4 * q, 4), vr(b, 4), vr(224 + 4 * q, 4) if s else "0"))
a("s_cmp_eq_u32 s%d, 0\ns_cselect_b32 s%d, s%d, 0" % (sZ, T0, sDSK))
a("v_mov_b32 v6, 0\nv_writelane_b32 v6, s%d, 0" % T0)
a("v_mov_b32 v240, v239\nv_mov_b32 v241, v239\nv_mov_b32 v242, v239\nv_add_f32 v224, v224, v6")
for i in (1, 2, 0): a("v_mov_b32_dpp v%d, v%d wave_shl:1 row_mask:0xf bank_mask:0xf" % (240 + i, 224 + i))
for c in range(4):
    b = 128 + 8 * c
    for i in range(8): a("v_cvt_pk_bf16_f32 v%d, v%d, v%d" % (b + i, 224 + 15 - 2 * i + c, 224 + 14 - 2 * i + c))
    a("ds_write_b128 v85, %s offset:%d\nds_write_b128 v85, %s offset:%d" % (vr(b, 4), KCOPY * c, vr(b + 4, 4), KCOPY * c + 16))
a("s_cbranch_scc0 L_nopad")
a("s_mov_b64 exec, 1")
a("v_cvt_pk_bf16_f32 v161, v224, 0\nv_cvt_pk_bf16_f32 v162, v225, v224\nv_cvt_pk_bf16_f32 v160, v226, v225")
a("ds_write_b32 v85, v161 offset:%d\nds_write_b32 v85, v162 offset:%d\nds_write_b64 v85, v[160:161] offset:%d" % (KCOPY + 32, 2 * KCOPY + 32, 3 * KCOPY + 32))
a("s_mov_b64 exec, -1\nL_nopad:")
stamp()
if not G1EARLY: gather1(a, True)
a("s_lshl_b32 s%d, s%d, 3\ns_lshr_b32 s%d, s2, 7\ns_lshl_b32 s%d, s%d, 2\ns_add_u32 s%d, s%d, s%d\ns_add_u32 s%d, s%d, s%d" % (T2, sXCD, T3, T3, T3, T2, T2, T3, T2, T2, sV))
a("s_lshl_b32 s%d, s%d, 15\ns_add_u32 s%d, s%d, 0x%x" % (sH2RD, T2, sH2RD, sH2RD, H2))
a("s_and_b32 s%d, s%d, 15\ns_lshl_b32 s%d, s%d, 4\ns_add_u32 s%d, s%d, s%d\ns_mul_i32 s%d, s%d, 7168\ns_add_u32 s%d, s%d, 0x%x" % (T3, sIDX, T2, T2, T2, T2, T3, sH3OWN, T2, sH3OWN, sH3OWN, H3))
a("s_and_b32 s%d, s%d, 7\ns_lshl_b32 s%d, s%d, 18\ns_mul_i32 s%d, s%d, %d\ns_add_u32 s%d, s%d, s%d\ns_add_u32 s%d, s%d, 0x%x" % (T3, sIDX, sW2RD, T3, T2, sV, 28 * 2048, sW2RD, sW2RD, T2, sW2RD, sW2RD, W2F))
a("s_lshl_b32 s%d, s%d, 2\ns_lshr_b32 s63, s2, 6\ns_add_u32 s63, s63, s%d\ns_lshl_b32 s63, s63, 1" % (T2, sXCD, T2))
a("s_lshl_b32 s%d, s63, 2\ns_add_u32 s%d, s%d, s%d\ns_mul_i32 s%d, s%d, %d\ns_add_u32 s%d, s%d, 0x%x" % (T2, T2, T2, sV, sH3RD, T2, 28 * 1024, sH3RD, sH3RD, H3))
a("v_min_u32 v6, 55, v1\nv_lshrrev_b32 v7, 1, v6\nv_and_b32 v6, 1, v6\nv_lshlrev_b32 v7, 9, v7\nv_lshl_add_u32 v88, v6, 7, v7")
a("s_mul_i32 s%d, s%d, %d\ns_lshr_b32 s68, s%d, 2\ns_lshl_b32 s68, s68, 8\ns_add_u32 s%d, s%d, s68\ns_bfe_u32 s68, s%d, 0x10001\ns_lshl_b32 s68, s68, 6\ns_add_u32 s%d, s%d, s68\ns_add_u32 s68, s%d, 0x%x" % (T2, sV, 28 * 512, T3, T2, T2, T3, T2, T2, T2, F2))
vm.wait("g1")
check1(a)
a("s_cbranch_vccnz R_g1\nB_g1:")
ool("R_g1:"); gather1(ool, False); ool("s_waitcnt vmcnt(0)"); check1(ool); ool("s_cbranch_vccz B_g1"); budget_loop(ool, "R_g1"); ool("s_branch B_g1")
vmem("buffer_load_dword v89, v88, %s, s68 offen sc1" % sr(WS, 4), "f2")
stamp()
a("v_lshlrev_b32 v9, 3, v0\nv_add_u32 v9, %d, v9" % (UB + 480))
for jp in range(2):
    for j2 in range(2):
        j = 2 * jp + j2
        X, S = 96 + 4 * j, 112 + 4 * j
        a("v_lshlrev_b32 v6, 16, v%d\nv_and_b32 v7, 0xffff0000, v%d" % (S, S))
        for rr in range(2):
            xr = 10 + 8 * jp + 4 * j2 + 2 * rr
            ur = 36 + 4 * j2 + 2 * rr
            a("v_lshlrev_b32 v%d, 16, v%d\nv_and_b32 v%d, 0xffff0000, v%d" % (xr, X + rr, xr + 1, X + rr))
            a("v_pk_add_f32 %s, %s, v[6:7] op_sel:[0,%d] op_sel_hi:[1,%d] neg_lo:[0,1] neg_hi:[0,1]" % (vr(ur, 2), vr(xr, 2), rr, rr))
            if rr == 0: a("v_pk_mul_f32 %s, %s, %s op_sel:[0,1] op_sel_hi:[1,1]" % (vr(ur, 2), vr(ur, 2), vr(S, 2)))
            else: a("v_pk_mul_f32 %s, %s, %s op_sel:[0,0] op_sel_hi:[1,0]" % (vr(ur, 2), vr(ur, 2), vr(S + 2, 2)))
    for ch in range(2):
        d = 44 + 4 * jp + 2 * ch
        a("v_cvt_pk_bf16_f32 v%d, v%d, v%d\nv_cvt_pk_bf16_f32 v%d, v%d, v%d" % (d, 36 + ch, 38 + ch, d + 1, 40 + ch, 42 + ch))
        a("ds_write_b64 v9, %s offset:%d" % (vr(d, 2), 2048 * jp + UCH * ch))
a("s_waitcnt lgkmcnt(0)\ns_barrier")
stamp()
a("s_or_b32 s%d, s2, s%d\ns_cbranch_scc1 L_noep" % (T0, sV))
a("v_mov_b32 v9, 0\ns_mov_b64 exec, 1")
a("buffer_store_dword v66, v9, %s, 0 offen sc1" % sr(WS, 4))
a("s_mov_b64 exec, -1\nL_noep:")

ABUF = (128, 192); BBUF = (160, 96)
def conv_reads(i):
    out = []
    for j in range(8):
        A, B = ABUF[i & 1] + 4 * j, BBUF[i & 1] + 4 * j
        off = 512 * (7 - j) + 64 * (3 - i)
        out.append(("ds_read_b64 %s, v86 offset:%d" % (vr(A, 2), off), ("c", i, j)))
        out.append(("ds_read_b64 %s, v86 offset:%d" % (vr(A + 2, 2), off + 8), ("c", i, j)))
        out.append(("ds_read_b128 %s, v87 offset:%d" % (vr(B, 4), 512 * j + 64 * (3 - i)), ("c", i, j)))
    return out
w2_i = [0]
def w2_load():
    i = w2_i[0]
    if i >= 56: return False
    if i and i % 4 == 0: a("s_add_u32 s%d, s%d, 0x1000" % (sW2RD, sW2RD))
    vmem("buffer_load_dwordx4 %s, v3, %s, s%d offen offset:%d sc1" % (ar(4 * i, 4), sr(WS, 4), sW2RD, 1024 * (i % 4)), "w2f")
    w2_i[0] += 1
    return True
clr_i = [0]
def clr3():
    i = clr_i[0]
    if i == 4: a("s_add_u32 s%d, s%d, 0x1000" % (T3, sH3OWN))
    vmem("buffer_store_dwordx4 v[32:35], v3, %s, s%d offen offset:%d sc1" % (sr(WS, 4), sH3OWN if i < 4 else T3, 1024 * (i % 4)), "clr3")
    clr_i[0] += 1
side = []
side += [lambda: w1_dma(1)] * (28 - dma_i[0])
side += [clr3] * 7
def f2check():
    vm.wait("f2")
    a("v_cmp_ne_u32 vcc, s%d, v89\ns_cbranch_vccnz R_f2\nB_f2:" % sTAG)
    ool("R_f2:\nbuffer_load_dword v89, v88, %s, s68 offen sc1\ns_waitcnt vmcnt(0)\nv_cmp_ne_u32 vcc, s%d, v89\ns_cbranch_vccz B_f2" % (sr(WS, 4), sTAG))
    budget_loop(ool, "R_f2"); ool("s_branch B_f2")
side += [f2check] + [w2_load] * OI("w2a", 16)
first = set()
pend = conv_reads(0)
for r_, t_ in pend[:12]: ds(r_, t_)
pend = pend[12:]
nmf = 0
SIDE_EVERY = max(1, 140 // max(1, len(side)))
for i in range(4):
    nxt = conv_reads(i + 1) if i < 3 else []
    pend = pend + nxt
    for mx in range(8):
        pairs = [(mx, m) for m in range(mx + 1) if mx + m <= 7] + [(j, mx) for j in range(mx) if j + mx <= 7]
        need = ("c", i, mx)
        while any(t == need for _, t in pend):
            r_, t_ = pend.pop(0); ds(r_, t_)
        if lg.has(need): lg.wait(need)
        for j, m in pairs:
            n = j + m
            acc = vr(224 + 4 * n, 4)
            a("v_mfma_f32_16x16x32_bf16 %s, %s, %s, %s" % (acc, vr(ABUF[i & 1] + 4 * j, 4), vr(BBUF[i & 1] + 4 * m, 4), acc if n in first else "0"))
            first.add(n); nmf += 1
            if pend:
                r_, t_ = pend.pop(0); ds(r_, t_)
            if side and nmf % SIDE_EVERY == 0: side.pop(0)()
while side: side.pop(0)()
stamp()
a("v_and_b32 v6, 15, v1\nv_lshrrev_b32 v7, 4, v1\nv_lshl_add_u32 v8, v7, 2, v6\nv_and_b32 v8, 15, v8\nv_lshl_add_u32 v8, v7, 4, v8")
a("s_lshl_b32 s%d, s%d, 13\ns_add_u32 s%d, s%d, %d\nv_lshl_add_u32 v8, v8, 4, s%d" % (T0, sV, T0, T0, EX, T0))
a("v_lshrrev_b32 v6, 2, v1\nv_and_b32 v7, 3, v1\nv_lshl_add_u32 v9, v7, 2, v6\nv_and_b32 v9, 15, v9\nv_lshl_add_u32 v9, v7, 4, v9")
a("s_add_u32 s%d, s%d, %d\nv_lshl_add_u32 v9, v9, 4, s%d" % (T0, sM0W, EX, T0))
a("s_barrier")
for n in range(8): a("ds_write_b128 v8, %s offset:%d" % (vr(224 + 4 * n, 4), 1024 * n))
vm.wait("clr3")
a("s_waitcnt lgkmcnt(0)\ns_barrier")
for jp in range(2):
    for sw in range(4): ds("ds_read_b128 %s, v9 offset:%d" % (vr(128 + 16 * jp + 4 * sw, 4), 8192 * sw + 4096 * jp), ("e", jp))
a("s_add_u32 s%d, s3, 0x100000" % T1)
for jp in range(2):
    lg.wait(("e", jp))
    b = 128 + 16 * jp
    for r in range(4):
        xr = 10 + 8 * jp + 2 * r
        a("v_add_f32 v%d, v%d, v%d\nv_add_f32 v%d, v%d, v%d" % (xr, xr, b + r, xr + 1, xr + 1, b + 8 + r))
        a("v_add_f32 v%d, v%d, v%d\nv_add_f32 v%d, v%d, v%d" % (xr, xr, b + 4 + r, xr + 1, xr + 1, b + 12 + r))
        a("v_cvt_pk_bf16_f32 v%d, v%d, v%d" % (36 + 4 * jp + r, xr, xr + 1))
    vmem("buffer_store_dwordx4 %s, v60, %s, s%d offen sc1" % (vr(36 + 4 * jp, 4), sr(WS, 4), 3 if jp == 0 else T1), "hs")
stamp()

a("v_and_b32 v6, 15, v1\nv_lshrrev_b32 v7, 4, v1")
a("v_lshrrev_b32 v8, 2, v1\nv_mul_u32_u24 v8, 224, v8\nv_and_b32 v9, 3, v1\nv_lshl_add_u32 v44, v9, 3, v8\nv_add_u32 v45, %d, v44" % (8 * 7168))
a("v_lshlrev_b32 v46, 8, v7\nv_lshl_add_u32 v46, v6, 3, v46")
a("v_lshlrev_b32 v47, 4, v7\nv_add_u32 v47, %d, v47" % CB)
a("v_lshrrev_b32 v8, 2, v6\nv_lshl_add_u32 v8, v8, 4, v6\nv_lshlrev_b32 v48, 2, v8")
a("v_and_b32 v49, 3, v1")
for i in range(4): a("v_mov_b32 v%d, 0x3f803f80" % (4 + i))
a("s_lshl_b32 s%d, s%d, 6\nv_add_u32 v50, s%d, v44\nv_add_u32 v51, %d, v50" % (T0, sV, T0, 8 * 7168))
def csread(s):
    b = 200 + 8 * (s % 4)
    for tt in range(2):
        for hf in range(2):
            ds("ds_read_b64_tr_b16 %s, v%d offset:%d" % (vr(b + 4 * tt + 2 * hf, 2), 50 + s // 8, (s % 8) * 7168 + 3584 * hf + 32 * tt), ("cs", s))
for s in range(3): csread(s)
for s in range(16):
    if s + 3 < 16: csread(s + 3)
    lg.wait(("cs", s))
    b = 200 + 8 * (s % 4)
    for tt in range(2):
        a("v_mfma_f32_16x16x32_bf16 %s, %s, v[4:7], %s" % (vr(184 + 4 * tt, 4), vr(b + 4 * tt, 4), vr(184 + 4 * tt, 4) if s else "0"))
LA = OI("la1", 5)
HOFF = (0, 1024, 128, 1152)
def hbuf(s): return 64 + 8 * (s % 8)
def hload(o, s, i, track):
    if i == 0 and s % 2 == 0 and track: a("s_add_u32 s%d, s%d, %d" % (T2, sH2RD, 2048 * s))
    if not track and i == 0: o("s_add_u32 s%d, s%d, %d" % (T0, sH2RD, 2048 * (s & ~1)))
    o("buffer_load_dwordx2 %s, v46, %s, s%d offen offset:%d sc1" % (vr(hbuf(s) + 2 * i, 2), sr(WS, 4), T2 if track else T0, HOFF[i] + 2048 * (s & 1)))
    if track: vm.issue(("h", s))
def hcheck(o, s):
    b = hbuf(s)
    o("v_max3_u32 v8, v%d, v%d, v%d\nv_max3_u32 v9, v%d, v%d, v%d\nv_max3_u32 v8, v%d, v%d, v8\nv_max_u32 v8, v8, v9\nv_cmp_eq_u32 vcc, -1, v8" % (b, b + 1, b + 2, b + 3, b + 4, b + 5, b + 6, b + 7))
def hretry(s):
    ool("R_h%d:" % s)
    for i in range(4): hload(ool, s, i, False)
    ool("s_waitcnt vmcnt(0)"); hcheck(ool, s); ool("s_cbranch_vccz B_h%d" % s); budget_loop(ool, "R_h%d" % s); ool("s_branch B_h%d" % s)
def wbuf(s): return 200 + 28 * (s & 1)
def wreads(s):
    return [("ds_read_b64_tr_b16 %s, v%d offset:%d" % (vr(wbuf(s) + 4 * T + 2 * hf, 2), 44 + s // 8, (s % 8) * 7168 + 3584 * hf + 32 * T), ("w", s)) for T in range(7) for hf in range(2)]
for s in range(LA):
    for i in range(4): hload(a, s, i, True)
a("s_lshl_b32 s%d, s%d, 7\nv_add_u32 v8, s%d, v47" % (T0, sV, T0))
a("s_mov_b32 exec_lo, 0x00010001\ns_mov_b32 exec_hi, 0x00010001")
a("ds_write_b128 v8, v[184:187]\nds_write_b128 v8, v[188:191] offset:64")
a("s_mov_b64 exec, -1\ns_waitcnt lgkmcnt(0)\ns_barrier")
for r_, t_ in wreads(0): ds(r_, t_)
stamp()
def hprep(s):
    b = hbuf(s)
    hretry(s)
    return [lambda: vm.wait(("h", s)), lambda: hcheck(a, s), lambda: a("s_cbranch_vccnz R_h%d\nB_h%d:" % (s, s)),
            lambda: a("v_swap_b32 v%d, v%d" % (b + 1, b + 4)), lambda: a("v_swap_b32 v%d, v%d" % (b + 3, b + 6))]
for f in hprep(0): f()
stamp()
for s in range(16):
    b = hbuf(s)
    mf = []
    for tau in range(2):
        mf.append("v_mfma_f32_16x16x32_bf16 %s, v[4:7], %s, %s" % (vr(184 + 4 * tau, 4), vr(b + 4 * tau, 4), vr(184 + 4 * tau, 4) if s else "0"))
        mf.append("v_mfma_f32_16x16x32_bf16 %s, %s, %s, %s" % (vr(192 + 4 * tau, 4), vr(b + 4 * tau, 4), vr(b + 4 * tau, 4), vr(192 + 4 * tau, 4) if s else "0"))
    for T in range(7):
        for tau in range(2):
            acc = vr(128 + 8 * T + 4 * tau, 4)
            mf.append("v_mfma_f32_16x16x32_bf16 %s, %s, %s, %s" % (acc, vr(wbuf(s) + 4 * T, 4), vr(b + 4 * tau, 4), acc if s else "0"))
    rd = wreads(s + 1) if s < 15 else []
    prep = hprep(s + 1) if s < 15 else []
    for k, m in enumerate(mf):
        if k == 4 and lg.has(("w", s)): lg.wait(("w", s))
        a(m)
        if rd: r_, t_ = rd.pop(0); ds(r_, t_)
        if k in (1, 3, 5, 7) and s + LA < 16: hload(a, s + LA, (k - 1) // 2, True)
        if k in (2, 6) and s + LA >= 16 and w2_i[0] < OI("w2a", 16) + OI("w2b", 8): w2_load()
        if prep:
            if k == 10: prep.pop(0)(); prep.pop(0)()
            elif k in (13, 14, 15): prep.pop(0)()
stamp()
a("v_cmp_eq_u32 s[%d:%d], 1, v49\nv_cmp_eq_u32 s[%d:%d], 2, v49\nv_cmp_eq_u32 vcc, 3, v49" % (T0, T1, T2, T3))
for tau in range(2):
    q = 192 + 4 * tau
    a("v_cndmask_b32 v%d, v%d, v%d, s[%d:%d]\nv_cndmask_b32 v%d, v%d, v%d, s[%d:%d]\nv_cndmask_b32 v%d, v%d, v%d, vcc" % (q, q, q + 1, T0, T1, q, q, q + 2, T2, T3, q, q, q + 3))
    ds("ds_bpermute_b32 v%d, v48, v%d" % (q + 1, q), "bp")
def cbread(T):
    b = 200 + 8 * (T % 2)
    ds("ds_read_b128 %s, v47 offset:%d" % (vr(b, 4), 64 * T), ("cb", T))
    ds("ds_read_b128 %s, v47 offset:%d" % (vr(b + 4, 4), 512 + 64 * T), ("cb", T))
cbread(0)
KG = 0.7978845608028654
a("v_mov_b32 v14, 0x%x\nv_mov_b32 v15, 0x%x\nv_mov_b32 v16, 1.0\nv_mov_b32 v17, 1.0" % (f2u(-2 * KG * LOG2E * 0.044715), f2u(-2 * KG * LOG2E)))
lg.wait("bp")
for tau in range(2):
    m_, q = 184 + 4 * tau, 193 + 4 * tau
    R = 10 + 2 * tau
    a("v_mul_f32 v%d, 0x%x, v%d\nv_mul_f32 v%d, 0x%x, v%d" % (m_, f2u(1 / 512), m_, q, f2u(1 / 512), q))
    a("v_fma_f32 v%d, -v%d, v%d, v%d\nv_max_f32 v%d, 0, v%d" % (q, m_, m_, q, q, q))
    a("v_add_f32 v8, 0x%x, v%d\nv_fmac_f32 v%d, 0x%x, v8\nv_rsq_f32 v%d, v%d" % (f2u(1e-5), q, q, f2u(1e-5), R, q))
    a("v_mul_f32 v%d, v%d, v%d" % (R + 1, R, m_))
a("s_add_u32 s%d, s%d, 0x1000" % (T3, sH3OWN))
for T in range(7):
    if T < 6: cbread(T + 1)
    lg.wait(("cb", T))
    cb = 200 + 8 * (T % 2)
    o = 216 + 4 * (T % 2)
    prs = [(tau, h) for tau in range(2) for h in range(2)]
    Z = lambda tau, h: 128 + 8 * T + 4 * tau + 2 * h
    E = lambda tau, h: 224 + 4 * tau + 2 * h
    for tau, h in prs: a("v_pk_fma_f32 %s, %s, %s, %s op_sel:[0,1,0] op_sel_hi:[1,1,1] neg_lo:[1,0,0] neg_hi:[1,0,0]" % (vr(E(tau, h), 2), vr(cb + 2 * h, 2), vr(10 + 2 * tau, 2), vr(cb + 4 + 2 * h, 2)))
    for tau, h in prs: a("v_pk_fma_f32 %s, %s, %s, %s op_sel_hi:[1,0,1]" % (vr(Z(tau, h), 2), vr(Z(tau, h), 2), vr(10 + 2 * tau, 2), vr(E(tau, h), 2)))
    for tau, h in prs: a("v_pk_mul_f32 %s, %s, %s" % (vr(E(tau, h), 2), vr(Z(tau, h), 2), vr(Z(tau, h), 2)))
    for tau, h in prs: a("v_pk_fma_f32 %s, %s, v[14:15], v[14:15] op_sel:[0,0,1] op_sel_hi:[1,0,1]" % (vr(E(tau, h), 2), vr(E(tau, h), 2)))
    for tau, h in prs: a("v_pk_mul_f32 %s, %s, %s" % (vr(E(tau, h), 2), vr(E(tau, h), 2), vr(Z(tau, h), 2)))
    for k in range(8): a("v_exp_f32 v%d, v%d" % (224 + k, 224 + k))
    for _ in range(2): w2_load()
    for tau, h in prs: a("v_pk_add_f32 %s, %s, v[16:17]" % (vr(E(tau, h), 2), vr(E(tau, h), 2)))
    for k in range(8): a("v_rcp_f32 v%d, v%d" % (224 + k, 224 + k))
    for _ in range(3): w2_load()
    for tau, h in prs: a("v_pk_mul_f32 %s, %s, %s" % (vr(E(tau, h), 2), vr(E(tau, h), 2), vr(Z(tau, h), 2)))
    for tau, h in prs: a("v_cvt_pk_bf16_f32 v%d, v%d, v%d" % (o + 2 * tau + h, E(tau, h), E(tau, h) + 1))
    a("v_permlane16_swap_b32 v%d, v%d\nv_permlane16_swap_b32 v%d, v%d" % (o, o + 2, o + 1, o + 3))
    vmem("buffer_store_dwordx4 %s, v3, %s, s%d offen offset:%d sc1" % (vr(o, 4), sr(WS, 4), sH3OWN if T < 4 else T3, 1024 * (T % 4)), "h1s")
while w2_load(): pass
stamp()

LA2 = OI("la2", 4)
GB = (192, 208, 224, 240, 64, 80, 96, 112)
def gbuf(g): return GB[g % 8]
def goff(g): return (g // 7) * 112 * 1024 + (g % 7) * 4096
def gload(o, g, i, track):
    if i == 0: o("s_add_u32 s%d, s%d, %d" % (T2 if track else T0, sH3RD, goff(g)))
    o("buffer_load_dwordx4 %s, v3, %s, s%d offen offset:%d sc1" % (vr(gbuf(g) + 4 * i, 4), sr(WS, 4), T2 if track else T0, 1024 * i))
    if track: vm.issue(("g", g))
def gcheck(o, g):
    b = gbuf(g)
    o("v_max3_u32 v8, v%d, v%d, v%d\nv_max3_u32 v9, v%d, v%d, v%d" % (b, b + 3, b + 4, b + 7, b + 8, b + 11))
    o("v_max3_u32 v8, v%d, v%d, v8\nv_max_u32 v8, v8, v9\nv_cmp_eq_u32 vcc, -1, v8" % (b + 12, b + 15))
def gprep(g):
    ool("R_q%d:" % g)
    for i in range(4): gload(ool, g, i, False)
    ool("s_waitcnt vmcnt(0)"); gcheck(ool, g); ool("s_cbranch_vccz B_q%d" % g); budget_loop(ool, "R_q%d" % g); ool("s_branch B_q%d" % g)
    return [lambda: (vm.wait(("g", g)), gcheck(a, g)), lambda: a("s_cbranch_vccnz R_q%d\nB_q%d:" % (g, g))]
a("v_lshrrev_b32 v6, 5, v1\nv_lshl_add_u32 v7, v6, 2, v1\nv_and_b32 v8, 15, v7\nv_add_u32 v7, 8, v7\nv_and_b32 v7, 15, v7\nv_and_b32 v6, 48, v1")
a("s_lshl_b32 s%d, s%d, 13" % (T0, sV))
a("v_add_u32 v8, v8, v6\nv_add_u32 v7, v7, v6\nv_lshl_add_u32 v44, v8, 4, s%d\nv_lshl_add_u32 v45, v7, 4, s%d" % (T0, T0))
a("v_lshrrev_b32 v6, 3, v1\nv_and_b32 v7, 7, v1\ns_lshl_b32 s%d, s%d, 3\nv_add_u32 v6, s%d, v6" % (T0, sV, T0))
a("v_lshl_add_u32 v8, v7, 2, v6\nv_and_b32 v8, 15, v8\nv_and_b32 v9, 16, v6\nv_add_u32 v8, v8, v9\nv_lshl_add_u32 v8, v7, 5, v8\nv_lshlrev_b32 v46, 4, v8")
a("v_and_b32 v8, 15, v6\nv_lshrrev_b32 v9, 4, v6\nv_lshl_add_u32 v8, v8, 1, v9")
a("v_lshlrev_b32 v47, 10, v8\nv_lshl_add_u32 v47, v7, 4, v47")
a("v_lshlrev_b32 v48, 2, v8\nv_lshl_add_u32 v48, v7, 9, v48")
a("s_and_b32 s%d, s%d, 7\ns_lshl_b32 s%d, s%d, 7\nv_lshl_add_u32 v9, v7, 4, s%d" % (T0, sIDX, T1, T0, T1))
vmem("global_load_dwordx4 v[20:23], v9, s[58:59]", "b2")
a("s_lshl_b32 s61, s63, 15\ns_add_u32 s62, s61, s%d" % T1)
a("s_lshl_b32 s%d, s%d, 12\ns_add_u32 s61, s61, s%d\ns_add_u32 s61, s61, 0x%x" % (T0, T0, T0, H2))
for g in range(LA2):
    for i in range(4): gload(a, g, i, True)
for f in gprep(0): f()
stamp()
RB = (KC, 0)
def red_write(th):
    out = []
    for par in range(2):
        for q in range(4):
            src = 128 + 32 * th + 16 * par + 4 * q
            if th == 0: out.append("ds_write_b128 v%d, %s offset:%d" % (50 + (q & 1), vr(src, 4), (par * 4 + q) * 1024))
            else: out.append("ds_write_b128 v%d, %s offset:%d" % (44 + (q & 1), vr(src, 4), (par * 4 + q) * 1024))
    return out
a("v_add_u32 v50, %d, v44\nv_add_u32 v51, %d, v45\nv_add_u32 v52, %d, v46" % (KC, KC, KC))
def res_load(th):
    if th: a("s_add_u32 s61, s61, 0x8000")
    for k in range(4): vmem("buffer_load_dword v%d, v48, %s, s61 offen offset:%d sc1" % (24 + 4 * th + k, sr(WS, 4), 128 * k), ("res", th))
def red_read(th):
    for sw in range(4):
        for par in range(2):
            ds("ds_read_b128 %s, v%d offset:%d" % (vr(128 + 8 * sw + 4 * par, 4), 52 if th == 0 else 46, 8192 * sw + 4096 * par), ("rr", th))
def red_math(th):
    ops = []
    for k in range(4):
        lo, hi = 128 + k, 132 + k
        ops.append("v_lshlrev_b32 v6, 16, v%d\nv_and_b32 v7, 0xffff0000, v%d" % (24 + 4 * th + k, 24 + 4 * th + k))
        ops.append("v_add_f32 v%d, v%d, v%d\nv_add_f32 v%d, v%d, v%d" % (lo, lo, lo + 8, hi, hi, hi + 8))
        ops.append("v_add_f32 v%d, v%d, v%d\nv_add_f32 v%d, v%d, v%d" % (lo + 16, lo + 16, lo + 24, hi + 16, hi + 16, hi + 24))
        ops.append("v_add_f32 v6, v6, v%d\nv_add_f32 v7, v7, v%d" % (12 + 2 * k, 13 + 2 * k))
        ops.append("v_add_f32 v%d, v%d, v%d\nv_add_f32 v%d, v%d, v%d" % (lo, lo, lo + 16, hi, hi, hi + 16))
        ops.append("v_add_f32 v6, v6, v%d\nv_add_f32 v7, v7, v%d" % (lo, hi))
        ops.append("v_cvt_pk_bf16_f32 v%d, v6, v7" % (36 + 4 * th + k))
    return ops
OUTF = opt.get("outf", "")
def out_store(th):
    if th: a("s_add_u32 s62, s62, 0x8000")
    vmem("buffer_store_dwordx4 %s, v47, %s, s62 offen %s" % (vr(36 + 4 * th, 4), sr(OUTS, 4), OUTF), "out")
extra = []
for g in range(14):
    th, gl = g // 7, g % 7
    prep = gprep(g + 1) if g < 13 else []
    if g == 0:
        extra = [lambda: res_load(0)] + [lambda k=k: a("v_lshlrev_b32 v%d, 16, v%d\nv_and_b32 v%d, 0xffff0000, v%d" % (12 + 2 * k, 20 + k, 13 + 2 * k, 20 + k)) for k in range(4)]
    if g == 7: extra = [lambda: res_load(1), None] + [lambda s_=s_: ds(s_, "rw") for s_ in red_write(0)]
    if g == 9: extra = [lambda: (lg.drain(), a("s_barrier"), red_read(0))]
    if g == 10: extra = [lambda: (lg.wait(("rr", 0)), vm.has(("res", 0)) and vm.wait(("res", 0)))] + [lambda s_=s_: a(s_) for s_ in red_math(0)] + [lambda: out_store(0)]
    k = 0
    for i in range(4):
        for par in range(2):
            acc = vr(128 + 32 * th + 16 * par, 16)
            ks = 4 * gl + i
            a("v_mfma_f32_32x32x16_bf16 %s, %s, %s, %s" % (acc, ar(8 * ks + 4 * par, 4), vr(gbuf(g) + 4 * i, 4), acc if ks else "0"))
            if k % 2 == 0 and g + LA2 < 14: gload(a, g + LA2, k // 2, True)
            for _ in range(2):
                if extra:
                    e_ = extra.pop(0)
                    if e_: e_()
            if prep and k in (6, 7): prep.pop(0)()
            k += 1
assert not extra
stamp()
for s_ in red_write(1): ds(s_, "rw")
lg.drain(); a("s_barrier")
red_read(1)
lg.wait(("rr", 1))
if vm.has(("res", 1)): vm.wait(("res", 1))
for s_ in red_math(1): a(s_)
out_store(1)
if STAMPS == 3:
    vm.drain(); stamp()
    pr = OI("probe")
    a("s_sub_u32 s%d, s%d, s%d\ns_lshl_b32 s%d, s%d, 2" % (T0, sST + 2 * pr, sST, T0, T0))
    a("L_spin:\ns_memrealtime s[66:67]\ns_waitcnt lgkmcnt(0)\ns_sub_u32 s66, s66, s%d\ns_cmp_lt_u32 s66, s%d\ns_cbranch_scc1 L_spin" % (sST + 30, T0))
elif STAMPS:
    vm.drain(); stamp()
    NST = nst[0]
    a("s_mul_i32 s%d, s2, %d\ns_add_u32 s%d, s%d, 0x%x" % (T0, 16 * 8, T0, T0, STAMP_OFF))
    a("s_cmp_lg_u32 s%d, %d\ns_cbranch_scc1 L_end\ns_mov_b64 exec, 1\nv_mov_b32 v1, s%d" % (sV, OI("stwave", 0), T0))
    for j in range(16):
        a("v_mov_b32 v2, s%d\nv_mov_b32 v3, s%d" % (sST + 2 * min(j, NST - 1), sST + 1 + 2 * min(j, NST - 1)))
        a("buffer_store_dwordx2 v[2:3], v1, %s, 0 offen offset:%d\ns_nop 1" % (sr(WS, 4), 8 * j))
if STAMPS == 2:
    a("s_load_dwordx2 s[8:9], s[0:1], 104\ns_mov_b32 s10, 256\ns_waitcnt lgkmcnt(0)\nv_mov_b32 v1, 0")
    for j in range(16):
        a("v_mov_b32 v2, s%d" % (sST + 2 * min(j, NST - 1)))
        if j == 0: a("v_not_b32 v2, v2")
        a("buffer_atomic_umax v2, v1, s[8:11], 0 offen offset:%d sc1\ns_nop 1" % (4 * j))
a("L_end:\ns_endpgm\nL_code_end:")
lines, added = hazard.fix(a.l, verbose=OI("hv"))
lines2, added2 = hazard.fix(ool.l)
body = "\n".join(lines + lines2) + "\n"
open(sys.argv[1], "w").write(build_file([(name, 256, 256, LDS_BYTES)], body, [descriptor(name, 512, 256, 102)]))
print("wrote", sys.argv[1], "nops added", added, added2, "lds", LDS_BYTES, "stamps", nst[0])
```

```python
import re
TRANS = ("v_exp_f32", "v_log_f32", "v_rcp_f32", "v_rsq_f32", "v_sqrt_f32", "v_sin_f32", "v_cos_f32", "v_rcp_iflag_f32")
RE_REG = re.compile(r"\b([vas])(\d+)\b|\b([vas])\[(\d+):(\d+)\]|\b(vcc|exec|m0|vcc_lo|vcc_hi|exec_lo|exec_hi)\b")
def regs(tok):
    out = []
    for m in RE_REG.finditer(tok):
        if m.group(1): out.append(m.group(1) + m.group(2))
        elif m.group(3): out += [m.group(3) + str(i) for i in range(int(m.group(4)), int(m.group(5)) + 1)]
        else: out.append(m.group(6).split("_")[0])
    return out
def split_ops(s):
    ops, depth, cur = [], 0, ""
    for ch in s:
        if ch == "[": depth += 1
        if ch == "]": depth -= 1
        if ch == "," and depth == 0: ops.append(cur.strip()); cur = ""
        else: cur += ch
    if cur.strip(): ops.append(cur.strip())
    return ops
class I:
    pass
def parse(line):
    s = line.split(";")[0].strip()
    if not s or s.endswith(":") or s.startswith("."): return None
    p = s.split(None, 1)
    op = p[0]; rest = p[1] if len(p) > 1 else ""
    base = re.sub(r"_(e32|e64|dpp|sdwa)$", "", op)
    ops = split_ops(rest)
    i = I(); i.op = base; i.text = s; i.w = []; i.r = []; i.kind = "other"; i.srcc = []; i.ab = []; i.data = []
    i.dpp = op.endswith("_dpp") or bool(re.search(r"quad_perm|row_shr|row_shl|row_ror|wave_sh|wave_ro|row_mirror|row_half_mirror|row_bcast|row_newbcast", rest))
    R = [regs(o.split(" ")[0] if not o.startswith("-") else o) for o in ops]
    R = [regs(re.split(r"\s+(?=[a-z_]+:|offen|idxen|sc0|sc1|nt|lds|off\b)", o)[0]) for o in ops]
    if base.startswith("v_smfmac"):
        i.kind = "mfma"; i.passes = 8
        i.w = R[0]; i.ab = R[1] + R[2] + R[3]; i.srcc = R[0]; i.r = i.ab + i.srcc
    elif base.startswith("v_mfma"):
        i.kind = "mfma"; i.passes = 8 if "32x32x16" in base else (4 if "16x16x32" in base else 16)
        i.w = R[0]; i.ab = R[1] + R[2]; i.srcc = R[3] if len(R) > 3 else []; i.r = i.ab + i.srcc
    elif base.startswith("v_"):
        i.kind = "valu"
        if base in ("v_swap_b32", "v_permlane16_swap_b32", "v_permlane32_swap_b32"):
            i.w = R[0] + R[1]; i.r = R[0] + R[1]
        elif base in ("v_add_co_u32", "v_sub_co_u32", "v_addc_co_u32", "v_subb_co_u32", "v_mad_u64_u32", "v_div_scale_f32"):
            i.w = R[0] + R[1]; i.r = sum(R[2:], [])
        elif base == "v_nop": pass
        else:
            i.w = R[0]; i.r = sum(R[1:], [])
            if base.startswith(("v_fmac", "v_dot2c", "v_pk_fmac", "v_writelane")) or i.dpp: i.r += R[0]
            if base.startswith("v_cmpx"): i.w += ["exec"]
            if base == "v_cndmask_b32" and len(R) == 3: i.r += ["vcc"]
        i.trans = base in TRANS
        i.dl = base.startswith("v_dot")
    elif base.startswith("ds_"):
        i.kind = "ds"
        if base.startswith(("ds_read", "ds_bpermute", "ds_permute", "ds_swizzle")): i.w = R[0]; i.r = sum(R[1:], [])
        else: i.r = sum(R, [])
        if "addtid" in base: i.r += ["m0"]; i.m0 = True
    elif base.startswith(("buffer_", "global_")):
        i.kind = "vmem"
        lds = bool(re.search(r"\blds\b", rest)) or "_lds_" in base
        if "load" in base and not lds: i.w = R[0]; i.r = sum(R[1:], [])
        else:
            i.r = sum(R, [])
            if "store" in base and ("x3" in base or "x4" in base):
                i.data = R[0] if base.startswith("buffer_") else R[1]
        if lds: i.r += ["m0"]; i.m0 = True
    elif base.startswith("s_"):
        i.kind = "salu"
        if base in ("s_nop", "s_waitcnt", "s_barrier", "s_endpgm", "s_branch", "s_sleep", "s_setprio") or base.startswith(("s_cbranch", "s_cmp")):
            i.r = sum(R, [])
        else:
            i.w = R[0] if R else []; i.r = sum(R[1:], [])
            if "saveexec" in base: i.w += ["exec"]
    return i
def need(p, c):
    n = 0
    pw, cr, cw = set(p.w), set(c.r), set(c.w)
    if p.kind == "valu":
        vw = {x for x in pw if x[0] in "va" and x != "vcc"}
        sw = pw - vw
        if c.kind == "mfma" and vw & cr: n = max(n, 2)
        if c.kind == "mfma" and "exec" in pw: n = max(n, 4)
        if c.kind == "valu":
            if c.dpp and vw & cr: n = max(n, 2)
            if c.dpp and "exec" in pw: n = max(n, 5)
            if c.op.startswith("v_permlane") and vw & cr: n = max(n, 2)
            if c.op in ("v_readlane_b32", "v_readfirstlane_b32") and vw & cr: n = max(n, 1)
            if c.op in ("v_readlane_b32", "v_writelane_b32") and sw & cr: n = max(n, 4)
            if c.op in ("v_readlane_b32", "v_readfirstlane_b32", "v_writelane_b32") and "exec" in pw: n = max(n, 4)
            if sw & cr: n = max(n, 2)
            if p.trans and not c.trans and vw & cr: n = max(n, 1)
            if p.dl and (vw & (cr | cw)):
                if c.op != p.op: n = max(n, 3)
                else:
                    ab = set(sum([regs(o) for o in split_ops(c.text.split(None, 1)[1])[1:3]], []))
                    if vw & ab: n = max(n, 3)
        if p.dl and c.kind in ("vmem", "ds", "mfma") and vw & cr: n = max(n, 3)
        if p.trans and c.kind in ("vmem", "ds", "mfma") and vw & cr: n = max(n, 2)
        if c.kind == "vmem" and sw & cr: n = max(n, 5)
        if c.kind == "salu" and sw & cr: n = max(n, 1)
    elif p.kind == "mfma":
        d = {4: 8, 8: 12, 16: 20}[p.passes]
        if c.kind == "mfma":
            if pw & set(c.ab): n = max(n, d)
            if pw & set(c.srcc):
                if not (p.w == c.srcc and p.passes == c.passes): n = max(n, d - 2)
            elif pw & cw: n = max(n, d)
        elif c.kind in ("valu", "vmem", "ds"):
            if pw & (cr | cw): n = max(n, d)
        if c.kind == "valu" and set(p.srcc) & cw: n = max(n, {4: 3, 8: 7, 16: 15}[p.passes])
    elif p.kind == "salu":
        if "m0" in pw and getattr(c, "m0", False): n = max(n, 1)
    elif p.kind == "vmem":
        if p.data and set(p.data) & cw: n = max(n, 2 if c.kind == "valu" else 1)
    return n
def states(i):
    if i.op == "s_nop": return int(i.text.split()[1], 0) + 1
    return 1
def fix(lines, verbose=False):
    out, hist, added = [], [], 0
    pos = 0
    for ln in lines:
        i = parse(ln)
        if i is None: out.append(ln); continue
        req = 0
        for p, ppos in reversed(hist):
            dist = pos - ppos
            if dist >= 20: break
            n = need(p, i)
            if n > dist: req = max(req, n - dist)
        if req:
            if verbose: print("hazard: +%d before %s" % (req, i.text))
            k = req
            while k > 0:
                m = min(k, 16); out.append("    s_nop %d" % (m - 1)); k -= m
            pos += req; added += 1
        out.append(ln)
        pos += states(i)
        hist.append((i, pos))
        if len(hist) > 40: hist.pop(0)
    return out, added
```

```python
import sys, math, struct
from asmlib import *
import hazard

opt = dict(kv.split("=") for kv in sys.argv[2:])
OI = lambda k, d=0: int(opt.get(k, d))
STAMPS = OI("stamps")
SKIP = opt.get("skip", "").split(",")
def f2u(x): return struct.unpack("<I", struct.pack("<f", x))[0]

S1, FL, HC, H2, H3, PX = 0x4000, 0x8000, 0x40000, 0x100000, 0x340000, 0xa40000
X1 = H2
LFB = 0x10000
PXS = 2304
STAMP_OFF = 0x8000000
KC = 0; KCOPY = 4160; KCH = 4 * KCOPY
UB = KC + 2 * KCH; UCH = 4576
W1L = 47872
CB = W1L + 114688
TROW = 544; TCH = 72 * TROW; TBL = 42752; TX = 24576
W2L = W1L - 28672
BROW = 144; BWAVE = 32 * BROW
FLG = CB + 1152
FA, FC, FF, FS_, FK, FT = FLG, FLG + 16, FLG + 32, FLG + 48, FLG + 64, FLG + 80
SX = 42496
USC = 256.0
EXB = lambda sw: KCH * (sw >> 1) + 8192 * (sw & 1)
LDS_BYTES = 163840
WS, W1S, W2S, OUTS = 4, 12, 16, 20
sQ = 8
sV, sBUD = 24, 28
T0, T1, T2, T3 = 64, 65, 66, 67
NAMES = dict(P=3, V=24, XCD=25, IDX=26, TAG=27, BUD=28, C=29, Z=30, H3OWN=31, CBK=32, FS=33, M0W=34, FQ=35, LAM=60, LDT=61, DSK=62, FLO=63,
             T0=64, T1=65, T2=66, T3=67)
sTAG, sH3OWN, sM0W = 27, 31, 34
sG, sPS, sPR, sOUT, sHC = 36, 40, 44, 47, 48
sST = 70

ent, hh_, mm_, ool = Asm(), Asm(), Asm(), Asm()
cur = [ent]
def a(s): cur[0](s)
name = NAME + "_kernel"

class Ctr:
    def __init__(self, nm, mx): self.nm, self.mx, self.q = nm, mx, []
    def issue(self, tag): self.q.append(tag)
    def wait(self, tag):
        if tag not in self.q: return
        idx = max(i for i, t in enumerate(self.q) if t == tag)
        n = len(self.q) - 1 - idx
        a("s_waitcnt %s(%d)" % (self.nm, min(n, self.mx)))
        self.q = self.q[idx + 1:]
    def has(self, tag): return tag in self.q
    def drain(self):
        a("s_waitcnt %s(0)" % self.nm); self.q = []
vm = Ctr("vmcnt", 63); lg = Ctr("lgkmcnt", 15)
def vmem(s, tag):
    if tag in SKIP: return
    a(s); vm.issue(tag)
def ds(s, tag): a(s); lg.issue(tag)
STSEL = [int(x) for x in opt["stsel"].split(",")] if "stsel" in opt else None
used = set()
ZOOM = opt.get("zoom", "")
def stamp(k, zoom=""):
    if STAMPS and (STSEL is None or k in STSEL or k == 15) and (zoom == ZOOM or (not zoom and k > 8)):
        used.add((id(cur[0]), k))
        a("s_memrealtime s[%d:%d]" % (sST + 2 * k, sST + 1 + 2 * k))
        if k == 15: a("s_waitcnt lgkmcnt(0)")
def vr(b, n): return "v[%d:%d]" % (b, b + n - 1)
def sr(b, n): return "s[%d:%d]" % (b, b + n - 1)
WSR = sr(WS, 4)
def retry_block(nm, loads, check):
    ool("R_%s:\ns_sub_u32 s%d, s%d, 1\ns_cbranch_scc1 X_%s" % (nm, sBUD, sBUD, nm))
    for l_ in loads: ool(l_)
    ool("s_waitcnt vmcnt(0)"); check(ool)
    ool("s_cbranch_vccnz R_%s\ns_branch B_%s\nX_%s:\ns_mov_b32 s%d, 0\ns_branch B_%s" % (nm, nm, nm, sBUD, nm))
def lds_wait(nm, rd, check):
    ool("R_%s:" % nm)
    for l_ in rd: ool(l_)
    ool("s_waitcnt lgkmcnt(0)"); check(ool)
    ool("s_cbranch_vccnz R_%s\ns_branch B_%s" % (nm, nm))
def S(txt):
    a(txt.format(**{k: "s%d" % v for k, v in NAMES.items()}).replace("; ", "\n"))
def finish(role):
    if STAMPS == 3 and role == "M":
        vm.drain(); stamp(15)
        a("s_sub_u32 s%d, s%d, s%d\ns_lshl_b32 s%d, s%d, 2" % (T0, sST + 2 * OI("probe"), sST, T0, T0))
        a("L_spin:\ns_memrealtime s[66:67]\ns_waitcnt lgkmcnt(0)\ns_sub_u32 s66, s66, s%d\ns_cmp_lt_u32 s66, s%d\ns_cbranch_scc1 L_spin" % (sST + 30, T0))
    elif STAMPS == 1 and role == opt.get("strole", "M"):
        vm.drain(); stamp(15)
        a("s_mul_i32 s%d, s2, %d\ns_add_u32 s%d, s%d, 0x%x" % (T0, 17 * 8, T0, T0, STAMP_OFF))
        a("s_cmp_lg_u32 s%d, %d\ns_cbranch_scc1 L_end%s\ns_mov_b64 exec, 1\nv_mov_b32 v1, s%d" % (sV, OI("stwave", 0), role, T0))
        for j in range(16):
            k = j if ((id(cur[0]), j) in used or (id(ent), j) in used) else 0
            a("v_mov_b32 v2, s%d\nv_mov_b32 v3, s%d" % (sST + 2 * k, sST + 1 + 2 * k))
            a("buffer_store_dwordx2 v[2:3], v1, %s, 0 offen offset:%d\ns_nop 1" % (WSR, 8 * j))
        a("s_sub_u32 s%d, 0x40000, s%d\ns_mul_i32 s%d, s%d, 100\ns_add_u32 s%d, s%d, s%d\ns_addc_u32 s%d, s%d, 0" % (T0, sBUD, T0, T0, T0, T0, sST, T1, sST + 1))
        a("v_mov_b32 v2, s%d\nv_mov_b32 v3, s%d\nbuffer_store_dwordx2 v[2:3], v1, %s, 0 offen offset:128" % (T0, T1, WSR))
    a("L_end%s:\ns_endpgm" % role)
MKTAG = "s_add_u32 {TAG}, {TAG}, 0x1739b9; s_or_b32 {TAG}, {TAG}, 0xffc00000"
def roles():
    for s_, k in ((WS, "ws"), (W1S, "w1"), (W2S, "w2"), (OUTS, "out")):
        a("s_mov_b32 s%d, 0x%x\ns_mov_b32 s%d, 0x20000" % (s_ + 2, SZ[k], s_ + 3))
    S("s_mov_b32 {BUD}, 0x40000; s_lshr_b32 {T0}, {IDX}, 2; s_add_u32 {CBK}, {T0}, {IDX}; s_and_b32 {CBK}, {CBK}, 3")
    S("s_and_b32 {T1}, {XCD}, 1; s_lshl_b32 {T1}, {T1}, 3; s_add_u32 {T0}, {T0}, {T1}; s_lshl_b32 {T0}, {T0}, 2; s_add_u32 {LAM}, {T0}, {V}")
    S("s_lshr_b32 {FQ}, {XCD}, 1; s_and_b32 {FLO}, {IDX}, 3; s_lshl_b32 {T0}, {FQ}, 2; s_add_u32 {FS}, {T0}, {FLO}; s_lshl_b32 {M0W}, {V}, 10")
    S("s_lshl_b32 {T2}, {LAM}, 4; s_add_u32 {T0}, {T2}, {FS}; s_mul_i32 {H3OWN}, {T0}, 7168; s_add_u32 {H3OWN}, {H3OWN}, 0x%x" % H3)
def px_bases():
    S("s_lshl_b32 {T2}, {LAM}, 4; s_lshl_b32 {T1}, {CBK}, 2; s_add_u32 {T2}, {T2}, {T1}; s_add_u32 {T2}, {T2}, {FQ}")
    for t in (1, 2, 3):
        S("s_xor_b32 {T0}, {T2}, %d; s_mul_i32 {T0}, {T0}, %d; s_add_u32 s%d, {T0}, 0x%x" % (t, 3 * PXS, sPS + t, PX + PXS * (t - 1)))

kernel_begin(ent, name)
a("s_cmp_lt_u32 s2, 256\ns_cbranch_scc1 L_go\ns_endpgm\nL_go:")
a("s_load_dwordx16 s[36:51], s[0:1], 0")
if STAMPS: a("s_memrealtime s[%d:%d]" % (sST, sST + 1))
a("s_load_dwordx2 s[%d:%d], s[0:1], %d" % (WS, WS + 1, KA["ws"]))
a("s_load_dwordx8 s[52:59], s[0:1], 64")
a("s_load_dwordx2 s[%d:%d], s[0:1], %d" % (OUTS, OUTS + 1, KA["out"]))
a("s_getpc_b64 s[68:69]\nL_pc:")
S("s_and_b32 {T0}, s2, 0xf8; v_lshrrev_b32 v4, 6, v0; v_add_lshl_u32 v5, v4, {T0}, 7; v_min_u32 v5, L_code_end-L_pc-4, v5")
a("global_load_dword v5, v5, s[68:69]")
S("v_readfirstlane_b32 {T3}, v4; v_and_b32 v1, 63, v0; v_and_b32 v0, 255, v0; s_and_b32 {XCD}, s2, 7; s_lshr_b32 {IDX}, s2, 3")
PMAP = 1
S("s_lshl_b32 {P}, {XCD}, 5; s_add_u32 {P}, {P}, {IDX}; s_and_b32 {V}, {T3}, 3")
S("s_and_b32 {T1}, s2, 0x80; s_and_b32 {T2}, s2, 63; s_lshl1_add_u32 {T1}, {T2}, {T1}; s_bfe_u32 {T2}, s2, 0x10006; s_lshl2_add_u32 {T1}, {T1}, {T2}; s_lshl_b32 {T1}, {T1}, 11")
S("v_and_b32 v6, 3, v1; v_lshrrev_b32 v7, 2, v0; v_lshl_add_u32 v8, v6, 12, {T1}; v_lshl_add_u32 v8, v7, 4, v8")
S("s_and_b32 {C}, {V}, 1; s_lshr_b32 {Z}, {V}, 1; s_lshl1_add_u32 {T2}, {P}, {C}; s_lshl1_add_u32 {T2}, {T2}, {Z}; s_lshl_b32 {T2}, {T2}, 7")
S("v_lshl_add_u32 v30, v1, 1, {T2}; s_lshl_b32 {T2}, {P}, 2")
a("v_lshlrev_b32 v9, 2, v1\nv_mov_b32 v10, 0\nv_mov_b32 v11, -1\nds_write_b32 v9, v11 offset:%d" % SX)
a("v_and_b32 v9, 0x7c, v9\nv_add_u32 v9, %d, v9\nds_write_b32 v9, v10" % FLG)
S("s_cmp_ge_u32 {T3}, 4; s_waitcnt lgkmcnt(0); s_cbranch_scc1 L_H")
for i in range(4): a("global_load_ushort v%d, v30, s[%d:%d]" % (26 + i, 38 + 2 * i, 39 + 2 * i))
S("s_load_dword {LDT}, s[46:47], {T2}; s_load_dword {DSK}, s[48:49], {T2}; s_load_dword {TAG}, s[4:5], 0x0")
a("s_barrier\ns_branch L_M")

cur[0] = hh_; vm.q = []; lg.q = []
a("L_H:")
for i in range(2): a("global_load_dwordx4 %s, v8, s[36:37] offset:%d" % (vr(128 + 4 * i, 4), 1024 * i))
S("s_load_dword {TAG}, s[4:5], 0x0")
if OI("hprio", 2): a("s_setprio %d" % OI("hprio", 2))
stamp(1, "hf")
a("s_barrier")
stamp(2, "hf")
roles()
a("s_mov_b64 s[%d:%d], s[52:53]\ns_mov_b64 s[%d:%d], s[56:57]" % (W1S, W1S + 1, W2S, W2S + 1))
def w1_setup():
    S("s_mul_i32 {T2}, {FS}, 224; s_mul_i32 {T1}, {V}, %d; s_add_u32 {T2}, {T2}, {T1}; s_lshr_b32 {T1}, {IDX}, 2; s_mul_i32 s50, {V}, 896" % (4 * 3584))
    for q in range(4):
        S("s_add_u32 {T0}, {T1}, %d; s_and_b32 {T0}, {T0}, 3; s_mul_i32 {T0}, {T0}, %d; s_add_u32 s%d, {T0}, {T2}" % (q, 128 * 3584, sQ + q))
    S("v_mul_u32_u24 v22, 4682, v1; v_lshrrev_b32 v22, 16, v22; v_mul_u32_u24 v22, %d, v22; v_lshl_add_u32 v52, v1, 4, v22" % (3584 - 224))
DMA_ORDER = list(range(24, 32)) + [21, 22, 23] + list(range(0, 21))
NDMA = 32
dma_i = [0]; masked = [False]
def unmask():
    if masked[0]: a("s_mov_b32 exec_hi, -1"); masked[0] = False
def w1_dma(n):
    for _ in range(n):
        i = DMA_ORDER[dma_i[0]]
        if not masked[0]: a("s_mov_b32 exec_hi, 0xffffff"); masked[0] = True
        a("s_add_u32 m0, s50, %d\ns_add_u32 s%d, s%d, %d" % (W1L + 3584 * i, T0, sQ + i // 8, 16 * 3584 * (i % 8)))
        vmem("buffer_load_dwordx4 v52, %s, s%d offen %slds" % (sr(W1S, 4), T0, opt.get("wfl", "sc1") + " "), "w1")
        dma_i[0] += 1
def run(fs):
    for f in fs:
        if f is not one_dma: unmask()
        f()
    unmask()
one_dma = lambda: w1_dma(1)
DMA0 = OI("dma0", 8)
if DMA0: w1_setup(); w1_dma(DMA0); unmask()
S("v_lshlrev_b32 v2, 4, v0; v_lshlrev_b32 v3, 4, v1; v_lshrrev_b32 v9, 3, v0; v_and_b32 v59, 0x70, v3; v_lshl_add_u32 v60, v9, 15, v59; v_lshl_add_u32 v59, v9, 10, v59")
S("s_and_b32 s68, s2, 63; s_lshl_b32 s68, s68, 15; s_and_b32 {T0}, s2, 0xc0; s_lshl1_add_u32 s68, {T0}, s68; s_add_u32 s68, s68, 0x%x; s_lshl_b32 s69, s2, 6; s_add_u32 s69, s69, 0x%x" % (H2, S1))
S("s_and_b32 {T0}, {P}, 0xf8; s_and_b32 {T1}, {P}, 2; s_lshl1_add_u32 {T0}, {T1}, {T0}; s_and_b32 {T1}, {P}, 4; s_lshl3_add_u32 {T0}, {T0}, {T1}")
S("s_and_b32 {T1}, {P}, 1; s_lshl1_add_u32 {T0}, {T0}, {T1}; s_lshl3_add_u32 s40, {T0}, 0x%x" % H2)
S("s_lshl_b32 s3, s3, 7; s_add_u32 s3, s3, 0x%x; s_add_u32 s46, s3, 0x100000; s_add_u32 s47, s3, 0x200000" % H2)
S("v_lshlrev_b32 v15, 6, v6; v_lshrrev_b32 v4, 4, v1; s_lshl_b32 {T0}, {V}, 4; v_lshl_add_u32 v4, v4, 2, {T0}; v_add_u32 v4, v4, v15")
a("v_mov_b32 v11, 0\nv_mov_b32 v12, 0\nv_mov_b32 v13, 0\nv_mov_b32 v14, 0x3f803f80\nv_mul_u32_u24 v6, 6, v6\nv_add_u32 v7, 3, v6")
CQ = 2.0 ** -7
for r_, x_ in ((16, 1 / 512), (17, USC / 512), (18, USC * USC / 512), (19, USC * USC * 1e-5), (20, CQ)): a("v_mov_b32 v%d, 0x%x" % (r_, f2u(x_)))
a("s_mov_b32 s49, 0x70007000\ns_waitcnt lgkmcnt(0)")
S(MKTAG)
S("s_and_b32 {T0}, {TAG}, 0x7000; s_mov_b32 s52, 0x70000000; v_bfe_u32 v34, {TAG}, v6, 3; v_bfe_u32 v35, {TAG}, v7, 3; v_lshl_or_b32 v34, v34, 28, {T0}; v_lshl_or_b32 v35, v35, 12, s52")
for j in range(67, 72): S("v_mov_b32 v%d, {TAG}" % j)
stamp(1); stamp(3, "hf")
for i in range(2):
    a("s_waitcnt vmcnt(%d)" % (1 - i + DMA0))
    stamp(4 + i, "hf")
    for k in range(4): a("v_dot2c_f32_bf16 v%d, v%d, v14\nv_dot2c_f32_bf16 v%d, v%d, v%d" % (10 + i, 128 + 4 * i + k, 12 + i, 128 + 4 * i + k, 128 + 4 * i + k))
a("v_permlane32_swap_b32 v10, v12\nv_permlane32_swap_b32 v11, v13\nv_add_f32 v10, v10, v12\nv_add_f32 v11, v11, v13")
a("v_permlane16_swap_b32 v10, v11\nv_add_f32 v10, v10, v11")
for n_ in (8, 4): a("v_add_f32_dpp v10, v10, v10 row_ror:%d row_mask:0xf bank_mask:0xf" % n_)
a("ds_write_b32 v4, v10 offset:%d" % SX)
stamp(6, "hf")
sxr = ["ds_read_b128 %s, v15 offset:%d" % (vr(136 + 4 * i, 4), SX + 16 * i) for i in range(4)]
sxc = lambda o: o("v_max3_u32 v10, v136, v139, v140\nv_max3_u32 v11, v143, v144, v147\nv_max3_u32 v10, v148, v151, v10\nv_max_u32 v10, v10, v11\nv_cmp_eq_u32 vcc, -1, v10")
for l_ in sxr: a(l_)
for k in range(4):
    a("v_lshlrev_b32 v%d, 16, v%d\nv_lshlrev_b32 v%d, 16, v%d" % (96 + 4 * k, 128 + k, 97 + 4 * k, 132 + k))
    a("v_and_b32 v%d, 0xffff0000, v%d\nv_and_b32 v%d, 0xffff0000, v%d" % (98 + 4 * k, 128 + k, 99 + 4 * k, 132 + k))
a("s_waitcnt lgkmcnt(0)"); sxc(a); a("s_cbranch_vccnz R_sx\nB_sx:")
lds_wait("sx", sxr, sxc)
stamp(7, "hf")
for x_, y_ in ((136, 140), (144, 148), (136, 144)):
    a("v_pk_add_f32 %s, %s, %s\nv_pk_add_f32 %s, %s, %s" % (vr(x_, 2), vr(x_, 2), vr(y_, 2), vr(x_ + 2, 2), vr(x_ + 2, 2), vr(y_ + 2, 2)))
a("v_pk_mul_f32 v[140:141], v[136:137], v[16:17] op_sel:[0,1] op_sel_hi:[1,1]")
a("v_pk_fma_f32 v[138:139], v[138:139], v[18:19], v[18:19] op_sel:[0,0,1] op_sel_hi:[1,0,1]")
a("v_pk_mul_f32 v[136:137], v[136:137], v[16:17] op_sel_hi:[1,0]")
a("v_pk_fma_f32 v[138:139], v[140:141], v[140:141], v[138:139] neg_lo:[1,0,0] neg_hi:[1,0,0]")
a("v_cvt_pk_bf16_f32 v66, v136, v137\nv_max_f32 v138, v138, v19\nv_max_f32 v139, v139, v19\nv_rsq_f32 v140, v138\nv_rsq_f32 v141, v139")
a("v_lshlrev_b32 v136, 16, v66\nv_and_b32 v137, 0xffff0000, v66")
a("v_pk_fma_f32 v[136:137], v[136:137], v[140:141], v[20:21] op_sel_hi:[1,1,0] neg_lo:[1,0,0] neg_hi:[1,0,0]")
for j in range(2):
    cs_ = range(4 * j, 4 * j + 4)
    for c_ in cs_: a("v_pk_fma_f32 %s, %s, v[140:141], v[136:137]" % (vr(96 + 2 * c_, 2), vr(96 + 2 * c_, 2)))
    for c_ in cs_: a("v_pk_add_f32 %s, %s, v[20:21] op_sel_hi:[1,0] neg_lo:[0,1] neg_hi:[0,1]" % (vr(96 + 2 * c_, 2), vr(96 + 2 * c_, 2)))
    for c_ in cs_: a("v_cvt_pk_bf16_f32 v%d, v%d, v%d" % (112 + c_, 96 + 2 * c_, 97 + 2 * c_))
    for c_ in cs_: a("v_bfi_b32 v%d, s49, v%d, v%d" % (112 + c_, 34 + (c_ & 1), 112 + c_))
    a("buffer_store_dwordx4 %s, v59, %s, s68 offen offset:%d sc1" % (vr(112 + 4 * j, 4), WSR, 512 * j))
S("s_cmp_lg_u32 {V}, 0; s_cbranch_scc1 L_H_c2; v_pk_mul_f32 v[64:65], v[138:139], v[140:141]")
a("buffer_store_dwordx4 v[68:71], v60, %s, s47 offen sc1\ns_mov_b64 exec, 15" % WSR)
a("buffer_store_dwordx4 v[64:67], v3, %s, s69 offen sc1" % WSR)
a("s_mov_b64 exec, -1\nL_H_c2:")
stamp(2); stamp(8, "hf")
S("v_and_b32 v21, 0x30, v2; v_lshrrev_b32 v9, 2, v0; v_lshl_add_u32 v21, v9, 15, v21; v_xor_b32 v36, 0x30003000, v34; v_xor_b32 v37, 0x30003000, v35")
S("s_lshl_b32 {T0}, {V}, 2; s_add_u32 {T0}, {T0}, %d; v_mov_b32 v91, {T0}; v_mov_b32 v92, %d" % (FLG, FLG))
for i in range(4): a("v_mov_b32 v%d, 0" % (44 + i))
S("v_lshrrev_b32 v8, 5, v1; v_and_b32 v9, 31, v1; v_min_u32 v9, 29, v9; s_movk_i32 {T3}, %d; v_lshlrev_b32 v9, 4, v9; v_mad_u32_u24 v8, v8, {T3}, v9" % UCH)
a("ds_write_b128 v8, v[44:47] offset:%d" % UB)
S("v_lshrrev_b32 v8, 2, v1; v_and_b32 v9, 3, v1; v_lshl_add_u32 v8, v9, 2, v8; v_and_b32 v8, 15, v8; v_lshl_add_u32 v8, v9, 4, v8; v_lshl_add_u32 v61, v8, 4, {M0W}")
a("v_add_u32 v93, 0x1000, v2\nv_add_u32 v94, 0x2000, v2\nv_add_u32 v95, 0x3000, v2\nv_add_u32 v63, 0x1000, v3\nv_lshlrev_b32 v8, 3, v0\nv_lshlrev_b32 v62, 6, v0")
S("s_mov_b32 s69, 0x%x" % S1)
def all4(nm, off):
    rd = ["ds_read_b128 v[128:131], v92 offset:%d" % (off - FLG)]
    ck = lambda o: o("v_min3_u32 v128, v128, v129, v130\nv_min_u32 v128, v128, v131\nv_cmp_eq_u32 vcc, 0, v128")
    a(rd[0]); a("s_waitcnt lgkmcnt(0)"); lg.q = []; ck(a); a("s_cbranch_vccnz R_%s\nB_%s:" % (nm, nm))
    lds_wait(nm, ["s_sleep 1"] + rd, ck)
GAT = OI("gat", 1)
vm.drain()
if GAT: all4("ft", FT if GAT == 2 else FA)
stamp(3)
g1_loads = ["buffer_load_dwordx2 %s, v21, %s, s40 offen offset:%d sc1" % (vr(96 + 2 * k, 2), WSR, 128 * k) for k in range(4)]
UR = lambda jp, ch: 26 + 4 * jp + 2 * ch
def g1_use(o):
    for jp in range(2):
        for ch in range(2):
            o("v_xor_b32 v%d, v%d, v%d\nv_xor_b32 v%d, v%d, v%d" % (UR(jp, ch), 36 + ch, 96 + 4 * jp + ch, UR(jp, ch) + 1, 36 + ch, 98 + 4 * jp + ch))
    for jp in range(2):
        for ch in range(2): o("ds_write_b64 v8, %s offset:%d" % (vr(UR(jp, ch), 2), UB + 480 + 2048 * jp + UCH * ch))
    for jp in range(2):
        for ch in range(2): o("v_bitop3_b32 v%d, v%d, v%d, v%d bitop3:0x7e" % (104 + 2 * jp + ch, 96 + 4 * jp + ch, 98 + 4 * jp + ch, 34 + ch))
    o("v_or3_b32 v104, v104, v105, v106\nv_bitop3_b32 v104, v104, v107, s49 bitop3:0xa8\nv_cmp_ne_u32 vcc, 0, v104")
for l_ in g1_loads: vmem(l_, "g1")
if not DMA0: w1_setup()
w1_dma(OI("dma1", 0)); unmask()
assert GAT == 2 or dma_i[0] <= 11
vm.wait("g1")
g1_use(a)
a("s_cbranch_vccnz R_g1\nB_g1:")
retry_block("g1", g1_loads, g1_use)
stamp(4)
a("s_waitcnt lgkmcnt(0)\ns_barrier")
stamp(5)
S("s_cmp_lg_u32 {V}, 0; s_cbranch_scc1 L_H_nf; s_lshl_b32 {T0}, s2, 6; s_add_u32 {T0}, {T0}, 0x%x; s_mov_b64 exec, 15" % FL)
a("buffer_store_dwordx4 v[68:71], v3, %s, s%d offen sc1\ns_mov_b64 exec, -1\nL_H_nf:" % (WSR, T0))
s1_loads = ["buffer_load_dwordx4 %s, v%d, %s, s69 offen sc1" % (vr(112 + 4 * j, 4), (2, 93, 94, 95)[j], WSR) for j in range(4)]
for l_ in s1_loads: vmem(l_, "s1")
GT = OI("gt", 0)
if GT:
    S("s_bfe_u32 s51, s3, 0x60009; s_lshl3_add_u32 s51, s51, {V}; s_lshl4_add_u32 s51, s51, 0x%x; v_and_b32 v90, 3, v1; v_lshlrev_b32 v90, 2, v90" % LFB)
    vmem("buffer_load_dword v87, v90, %s, s51 offen sc1" % WSR, "s1")
S("s_mul_i32 {T2}, {FS}, 224; v_min_u32 v8, 55, v1; v_lshl_add_u32 v8, v8, 2, {T2}")
S("s_lshl_b32 {T0}, {CBK}, 2; s_add_u32 {T0}, {T0}, {FQ}; s_lshl_b32 {T0}, {T0}, 6; v_and_b32 v9, 15, v1; v_lshl_add_u32 v9, v9, 2, {T0}")
vmem("global_load_dword v38, v8, s[54:55]", "b"); vmem("global_load_dword v39, v9, s[58:59]", "b")
S("v_lshrrev_b32 v8, 4, v1; v_and_b32 v9, 3, v1; v_bfe_u32 v49, v1, 2, 2; v_xor_b32 v49, v49, v8; v_xor_b32 v49, {FQ}, v49; v_lshlrev_b32 v49, 6, v49; v_lshl_add_u32 v49, v9, 4, v49; v_lshl_add_u32 v49, v8, 10, v49")
S("s_mul_i32 {T2}, {FQ}, %d; s_lshl_b32 {T1}, {V}, 12; s_add_u32 {T2}, {T2}, {T1}; s_lshl_b32 {T1}, {CBK}, 8; s_add_u32 {T2}, {T2}, {T1}" % (448 * 1024))
for b in range(4): S("s_xor_b32 {T0}, {FLO}, %d; s_mul_i32 {T0}, {T0}, %d; s_add_u32 s%d, {T0}, {T2}" % (b, 112 * 1024, 40 + b))
W2R = lambda b, i: (228 if b == 0 else 116 + 28 * b) + 4 * i
def w2_load(b, i):
    a("s_add_u32 s%d, s%d, %d" % (T0, 40 + b, 0x4000 * i))
    vmem("buffer_load_dwordx4 %s, v49, %s, s%d offen" % (vr(W2R(b, i), 4), sr(W2S, 4), T0), ("w2", b))
def w2_touch():
    S("s_lshl_b32 {T0}, {FQ}, 5; s_add_u32 {T0}, {T0}, {IDX}; s_lshl2_add_u32 {T0}, {T0}, {V}; s_mul_i32 {T0}, {T0}, %d; v_min_u32 v88, 55, v1; v_lshlrev_b32 v88, 6, v88" % (28 * 128))
    vmem("buffer_load_dword v88, v88, %s, s%d offen" % (sr(W2S, 4), T0), "w2t")
L_ = lambda f, *x: (lambda: f(*x))
WAT = OI("wat", 0)
seq = [one_dma] * (NDMA - dma_i[0])
w2_all = [(0, i) for i in range(7)] + [(b, i) for i in range(7) for b in (1, 2, 3)]
NREG = OI("nreg", 14)
seq = seq[:WAT] + [w2_touch] + seq[WAT:] + [L_(w2_load, *x) for x in w2_all[:NREG]]
NBD = OI("nbd", 25)
NXR = OI("nxr", 8)
run(seq[:NXR])
vm.wait("b")
s1c = lambda o: o("v_min3_u32 v6, v115, v119, v123\nv_max3_u32 v7, v115, v119, v123\nv_min3_u32 v6, v127, v67, v6\nv_max3_u32 v7, v127, v67, v7\nv_cmp_ne_u32 vcc, v6, v7")
s1c(a); a("s_cbranch_vccnz R_s1\nB_s1:")
retry_block("s1", s1_loads, s1c)
for jp in range(2):
    for j2 in range(2):
        St = 112 + 4 * (2 * jp + j2)
        a("v_lshlrev_b32 v6, 16, v%d\nv_and_b32 v7, 0xffff0000, v%d" % (St + 2, St + 2))
        for ch in range(2):
            x0 = 10 + 8 * jp + 4 * ch + 2 * j2; u_ = UR(jp, ch) + j2
            a("v_lshlrev_b32 v%d, 16, v%d\nv_and_b32 v%d, 0xffff0000, v%d" % (x0, u_, x0 + 1, u_))
            a("v_fma_f32 v%d, v%d, v%d, v6\nv_fma_f32 v%d, v%d, v%d, v7" % (x0, x0, St, x0 + 1, x0 + 1, St + 1))
a("v_lshlrev_b32 v6, 16, v38\nv_and_b32 v7, 0xffff0000, v38\nv_lshlrev_b32 v8, 3, v1\nv_add_u32 v8, %d, v8\nv_lshlrev_b32 v38, 16, v39\nv_and_b32 v39, 0xffff0000, v39" % (CB + 512))
a("ds_write_b64 v8, v[6:7]\ns_mov_b64 exec, 0xffff\nds_write_b64 v8, v[38:39] offset:512\ns_mov_b64 exec, -1")
NFL = OI("nfl", 16)
run(seq[NXR:NFL])
fl_load = "buffer_load_dword v89, v62, %s, s69 offen offset:12 sc1" % WSR
a("s_mov_b32 s69, 0x%x" % FL)
vmem(fl_load, "fl")
run(seq[NFL:NBD])
stamp(6)
vm.wait("fl")
S("v_cmp_ne_u32 vcc, {TAG}, v89; s_cbranch_vccnz R_fl")
a("B_fl:")
retry_block("fl", [fl_load], lambda o: o("v_cmp_ne_u32 vcc, s%d, v89" % sTAG))
stamp(7)
a("s_barrier")
for jp in range(2):
    for sw in range(4): ds("ds_read_b128 %s, v61 offset:%d" % (vr(96 + 16 * jp + 4 * sw, 4), EXB(sw) + 4096 * jp), ("e", jp))
for jp in range(2):
    lg.wait(("e", jp))
    b = 96 + 16 * jp
    for z in range(2):
        for ch in range(2):
            for h in range(2):
                xr = 10 + 8 * jp + 4 * ch + 2 * h
                a("v_pk_add_f32 %s, %s, %s" % (vr(xr, 2), vr(xr, 2), vr(b + 8 * ch + 4 * z + 2 * h, 2)))
    for r in range(4): a("v_cvt_pk_bf16_f32 v%d, v%d, v%d" % (36 + 4 * jp + r, 10 + 8 * jp + r, 14 + 8 * jp + r))
    vmem("buffer_store_dwordx4 %s, v60, %s, s%d offen sc1" % (vr(36 + 4 * jp, 4), WSR, 3 if jp == 0 else 46), "hs")
stamp(8)
late = seq[NBD:]
NW2 = OI("nw2", 99)
CSE = OI("cse", 0)
nw1 = NDMA - dma_i[0]
NX = min(OI("nx", 4), NW2 - nw1) if nw1 else 0
run(late[:nw1 + NX])
if CSE: vm.wait("w1"); a("ds_write_b32 v91, v91 offset:%d" % (FK - FLG))
run(late[nw1 + NX:NW2])
S("s_add_u32 {T0}, {M0W}, %d; v_add_u32 v47, {T0}, v3; v_add_u32 v46, %d, v47" % (W2L, 2 * 28672))
def w2_put(b, i): ds("ds_write_b128 v%d, %s offset:%d" % (47 if b < 2 else 46, vr(W2R(b, i), 4), 28672 * (b & 1) + 4096 * i), "w2p")
S("v_and_b32 v10, 15, v1; v_lshrrev_b32 v11, 5, v1; v_lshl_add_u32 v10, v10, 1, v11; s_mul_i32 {T0}, {V}, %d; v_mul_u32_u24 v19, %d, v10; v_add_u32 v19, {T0}, v19" % (BWAVE, BROW))
S("s_lshr_b32 {T0}, {IDX}, 2; s_lshl_b32 {T0}, {T0}, 6; s_add_u32 {T0}, {T0}, {FLO}; v_lshl_add_u32 v45, v1, 2, {T0}; v_and_b32 v45, 255, v45; v_lshlrev_b32 v45, 7, v45")
S("s_lshl_b32 {T1}, {LAM}, 15; s_add_u32 s48, {T1}, 0x%x" % H2)
S("s_lshl_b32 {T0}, {CBK}, 2; s_add_u32 {T0}, {T0}, {FQ}; s_lshl_b32 {T0}, {T0}, 11; s_lshl_b32 {T1}, {LAM}, 15; s_add_u32 {T0}, {T0}, {T1}; s_add_u32 s44, {T0}, 0x%x" % H2)
S("s_lshl_b32 {T0}, {V}, 16; s_add_u32 s45, s47, {T0}; s_and_b32 {T1}, s3, 0x%x; s_add_u32 {T0}, {T0}, {T1}; s_add_u32 s47, {T0}, 0x%x" % ((0x3c if PMAP else 0xe1) << 7, X1 + 0x200000))
if OI("hack", 1): vm.wait("hs")
assert dma_i[0] == NDMA
vm.wait("w1")
stamp(9)
HPF = OI("hpf", 0)
def h_prefetch():
    sk = OI("hpfs", 16)
    if sk: a("s_mov_b32 exec_lo, 0x%x" % (0xffffffff ^ ((1 << sk) - 1)))
    vmem("buffer_load_dword v44, v45, %s, s48 offen sc1" % WSR, "pf")
    if sk: a("s_mov_b32 exec_lo, -1")
if HPF == 2: h_prefetch()
a("s_barrier")
def tagcheck(regs):
    def f(o):
        for i, r in enumerate(regs): o("v_xor_b32 v%d, s%d, v%d" % (8 if i == 0 else 9, sTAG, r) + ("\nv_min_u32 v8, v8, v9" if i else ""))
        o("v_cmp_eq_u32 vcc, 0, v8")
    return f
def hugecheck(r):
    return ["v_max3_f32 v8, |v%d|, |v%d|, |v%d|" % r[:3], "v_max_f32_e64 v8, |v%d|, v8" % r[3], "v_cmp_le_f32 vcc, s52, v8"]
own_loads = ["buffer_load_dwordx4 %s, v3, %s, s44 offen offset:%d sc1" % (vr(96 + 4 * i, 4), WSR, 1024 * i) for i in range(2)]
for l_ in own_loads: vmem(l_, "own")
if HPF == 1: h_prefetch()
W2POS = OI("w2pos", 0)
def late_loads(pos):
    if pos == W2POS:
        for f in late[NW2:]:
            f()
            if OI("w2q"): a("s_waitcnt vmcnt(%d)" % OI("w2q"))
late_loads(0)
def w2_dma(b, i):
    a("s_add_u32 m0, s%d, %d\ns_add_u32 s%d, s%d, %d" % (sM0W, W2L + 28672 * b + 4096 * i, T0, 40 + b, 0x4000 * i))
    vmem("buffer_load_dwordx4 v49, %s, s%d offen lds" % (sr(W2S, 4), T0), "w2")
put_i = [0]
def puts(n):
    for b, i in w2_all[put_i[0]:n]: w2_put(b, i)
    put_i[0] = max(put_i[0], n)
if OI("p0", 1) and NREG >= 7 and (W2POS == 0 or len(late) - NW2 <= NREG - 7):
    vm.wait(("w2", 0)); puts(7)
S("s_or_b32 {T0}, s2, {V}")
a("s_cbranch_scc0 R_ep\nB_ep:")
ool("R_ep:\ns_mov_b64 exec, 1\nbuffer_store_dword v67, v3, %s, 0 offen sc1\ns_mov_b64 exec, -1\ns_branch B_ep" % WSR)
a("s_setprio %d" % OI("hprio2", 0))
a("v_and_b32 v10, 56, v1\nv_add_u32 v10, %d, v10" % (CB + 1024))
ds("ds_read_b64 v[12:13], v10", "b2"); ds("ds_read_b64 v[14:15], v10 offset:64", "b2")
S("v_and_b32 v10, 7, v1; v_mul_u32_u24 v16, %d, v10; v_and_b32 v11, 56, v1; s_mul_i32 {T0}, {V}, %d; v_add3_u32 v16, v16, v11, {T0}" % (4 * BROW, BWAVE))
S("v_lshrrev_b32 v11, 5, v1; v_lshl_add_u32 v10, v10, 1, v11; v_and_b32 v17, 7, v10; v_lshlrev_b32 v17, 4, v17; v_lshrrev_b32 v10, 3, v10; v_lshl_add_u32 v17, v10, 15, v17")
S("v_and_b32 v18, 7, v1; v_lshlrev_b32 v18, 4, v18; v_bfe_u32 v10, v1, 3, 1; v_lshl_add_u32 v18, v10, 15, v18; v_lshrrev_b32 v10, 4, v1; v_lshl_add_u32 v18, v10, %d, v18" % (13 if PMAP else 10))
vm.wait("own")
for x in hugecheck((97, 99, 101, 103)): a(x)
a("s_cbranch_vccnz R_own\nB_own:")
retry_block("own", own_loads, lambda o: [o(x) for x in hugecheck((97, 99, 101, 103))])
if HPF == 3: h_prefetch()
stamp(10)
XV = lambda i, r, ch: 104 + 8 * i + 2 * r + ch
for i in range(2):
    for r in range(4): a("v_lshlrev_b32 v%d, 16, v%d\nv_and_b32 v%d, 0xffff0000, v%d" % (XV(i, r, 0), 96 + 4 * i + r, XV(i, r, 1), 96 + 4 * i + r))
for r in range(4):
    s_, q_ = 120 + 2 * r, 121 + 2 * r
    a("v_add_f32 v%d, v%d, v%d\nv_mul_f32 v%d, v%d, v%d" % (s_, XV(0, r, 0), XV(0, r, 1), q_, XV(0, r, 0), XV(0, r, 0)))
    a("v_add_f32 v%d, v%d, v%d\nv_fmac_f32 v%d, v%d, v%d" % (s_, s_, XV(1, r, 0), q_, XV(0, r, 1), XV(0, r, 1)))
    a("v_add_f32 v%d, v%d, v%d\nv_fmac_f32 v%d, v%d, v%d" % (s_, s_, XV(1, r, 1), q_, XV(1, r, 0), XV(1, r, 0)))
    a("v_fmac_f32 v%d, v%d, v%d" % (q_, XV(1, r, 1), XV(1, r, 1)))
for k in range(4): a("v_permlane32_swap_b32 v%d, v%d" % (120 + k, 124 + k))
for k in range(4): a("v_add_f32 v%d, v%d, v%d" % (120 + k, 120 + k, 124 + k))
for k in range(4): a("v_mov_b32 v%d, v%d" % (124 + k, 120 + k))
for k in range(4): a("v_permlane16_swap_b32 v%d, v%d" % (120 + k, 124 + k))
for k in range(4): a("v_add_f32 v%d, v%d, v%d" % (120 + k, 120 + k, 124 + k))
for k in range(4): a("v_add_f32_dpp v%d, v%d, v%d row_ror:8 row_mask:0xf bank_mask:0xf" % (120 + k, 120 + k, 120 + k))
a("s_mov_b32 exec_lo, 0xff\ns_mov_b32 exec_hi, 0xff")
vmem("buffer_store_dwordx4 v[120:123], v17, %s, s45 offen sc1" % WSR, "sts")
a("s_mov_b64 exec, -1")
lg.drain()
for i in range(2):
    for r in range(4):
        x = XV(i, r, 0)
        a("v_add_f32 v%d, v%d, v%d\nv_add_f32 v%d, v%d, v%d" % (x, x, 12 + 2 * i, x + 1, x + 1, 13 + 2 * i))
        a("ds_write_b64 v16, %s offset:%d" % (vr(x, 2), BROW * r + 64 * i))
late_loads(1)
if not CSE: all4("fk", FK)
vm.wait("sts")
stamp(11)
st_loads = ["buffer_load_dwordx4 %s, v18, %s, s47 offen offset:%d sc1" % (vr(128 + 4 * i, 4), WSR, (128 if PMAP else 256) * i) for i in range(4)]
st_regs = [129 + 2 * i for i in range(8)]
for l_ in st_loads: vmem(l_, "stg")
vm.wait("stg")
tagcheck(st_regs)(a)
a("s_cbranch_vccnz R_stg\nB_stg:")
retry_block("stg", st_loads, tagcheck(st_regs))
for k in range(4): a("v_add_f32 v%d, v%d, v%d\nv_add_f32 v%d, v%d, v%d" % (128 + k, 128 + k, 132 + k, 136 + k, 136 + k, 140 + k))
for k in range(4): a("v_add_f32 v%d, v%d, v%d" % (128 + k, 128 + k, 136 + k))
a("v_permlane32_swap_b32 v128, v130\nv_permlane32_swap_b32 v129, v131\nv_add_f32 v128, v128, v130\nv_add_f32 v129, v129, v131")
a("v_mov_b32 v130, v128\nv_mov_b32 v131, v129\nv_permlane16_swap_b32 v128, v130\nv_permlane16_swap_b32 v129, v131\nv_add_f32 v128, v128, v130\nv_add_f32 v129, v129, v131")
a("v_mul_f32 v128, 0x%x, v128\nv_mul_f32 v129, 0x%x, v129" % (f2u(1 / 512), f2u(1 / 512)))
a("v_fma_f32 v129, -v128, v128, v129\nv_max_f32 v129, 0, v129\nv_add_f32 v130, 0x%x, v129\nv_fmac_f32 v129, 0x%x, v130\nv_rsq_f32 v130, v129" % (f2u(1e-5), f2u(1e-5)))
a("v_mul_f32 v131, v130, v128\nds_write_b64 v19, v[130:131] offset:128\nds_write_b32 v91, v91 offset:%d" % (FS_ - FLG))
stamp(12)
late_loads(2)
all4("ff", FF)
vm.drain()
for x in w2_all[NREG:]: w2_dma(*x)
puts(NREG)
vm.drain(); lg.drain()
stamp(13)
if GT:
    S("s_movk_i32 {T0}, 64")
    a("L_gate:\nbuffer_load_dword v87, v90, %s, s51 offen sc1\ns_sub_u32 s%d, s%d, 1\ns_cbranch_scc1 L_gate_d\ns_waitcnt vmcnt(0)" % (WSR, T0, T0))
    S("v_cmp_ne_u32 vcc, {TAG}, v87; s_cbranch_vccnz L_gate")
    a("L_gate_d:")
stamp(14)
a("s_barrier")
finish("H")

cur[0] = mm_; vm.q = []; lg.q = []
a("L_M:")
if OI("prio", 0): a("s_setprio %d" % OI("prio"))
STEP = [1, 2, 4, 4, 8, 8, 8, 8]
OFS = [0, 5, 16, 0, 21, 24, 17, 14]; HI = [0, 1, 0, 1, 0, 0, 1, 1]
def slot_of(m, e): x = OFS[m] + e; return 16 + x + (x & ~3) + 4 * HI[m]
assert len({slot_of(m, e) for m in range(8) for e in range(16 // STEP[m] + (m > 0))}) == 47
pk4 = lambda v: sum(x << (8 * i) for i, x in enumerate(v))
S("v_and_b32 v6, 15, v1; v_lshrrev_b32 v7, 4, v1")
S("s_mul_i32 {T2}, {C}, %d; s_add_u32 {T2}, {T2}, %d; v_lshrrev_b32 v8, 2, v6; v_lshlrev_b32 v8, 3, v8; s_movk_i32 {T3}, %d" % (TCH, TBL, TROW))
S("v_lshl_add_u32 v86, v7, 4, {T2}; v_mad_u32_u24 v84, v6, {T3}, v86; s_lshl_b32 {T1}, {Z}, 8; s_add_u32 {T2}, {T2}, {T1}; s_sub_u32 m0, {T2}, %d" % TX)
S("s_mov_b32 {T0}, 0x%x; s_mov_b32 {T1}, 0x%x; s_cmp_eq_u32 {Z}, 0; s_cmov_b32 {T0}, 0x%x; s_cmov_b32 {T1}, 0x%x" %
  (pk4(OFS[4:]), pk4([16 + 4 * x for x in HI[4:]]), pk4(OFS[:4]), pk4([16 + 4 * x for x in HI[:4]])))
S("v_bfe_u32 v9, {T0}, v8, 8; v_bfe_u32 v87, {T1}, v8, 8; v_mad_u32_u24 v86, v87, {T3}, v86; s_cselect_b32 {T1}, 0xfefeff00, 0; v_bfe_i32 v85, {T1}, v8, 8")
S("v_and_b32 v8, 3, v6; s_cselect_b32 {T1}, 3, 2; v_min_u32 v8, {T1}, v8")
for q in range(4):
    S("v_add_u32 v87, %d, v8; v_cvt_f32_u32 v87, v87; v_ldexp_f32 v87, v87, v85; v_rndne_f32 v87, v87; v_cvt_u32_f32 v87, v87" % (4 * q))
    S("v_add_u32 v87, v87, v9; v_and_b32 v88, 0x3c, v87; v_add_u32 v87, v87, v88; v_mad_u32_u24 v%d, v87, {T3}, v86" % (80 + q))
S("s_mul_i32 {T0}, {C}, %d; s_lshl_b32 {T1}, {Z}, 11; s_sub_u32 {T1}, {T0}, {T1}; s_add_u32 {T1}, {T1}, %d" % (KCH, KC + 4064))
S("v_lshlrev_b32 v85, 5, v1; v_sub_u32 v85, {T1}, v85; s_movk_i32 {T3}, %d" % KCOPY)
for i in range(2): a("v_mov_b64 %s, 0" % vr(44 + 2 * i, 2))
S("v_bfe_u32 v8, v1, 1, 2; v_and_b32 v9, 1, v1; v_lshl_add_u32 v9, v9, 4, {T0}; v_mad_u32_u24 v8, v8, {T3}, v9")
a("ds_write_b128 v8, v[44:47] offset:%d" % (KC + 4096))
S("s_lshl_b32 {T0}, {V}, 2; s_add_u32 {T0}, {T0}, %d; v_mov_b32 v91, {T0}; v_xor_b32 v92, 8, v91" % FLG)
def conv_setup():
    S("v_and_b32 v6, 15, v1; v_lshrrev_b32 v7, 4, v1; s_mul_i32 {T2}, {C}, %d; s_movk_i32 {T3}, %d" % (KCH, KCOPY))
    S("s_lshl_b32 {T1}, {Z}, 8; s_sub_u32 {T0}, {T2}, {T1}; s_add_u32 {T0}, {T0}, %d" % (KC + 288))
    S("v_add_u32 v8, 1, v6; v_and_b32 v9, 3, v8; v_and_b32 v8, 28, v8; v_lshlrev_b32 v8, 1, v8")
    S("v_lshl_add_u32 v86, v7, 4, {T0}; v_sub_u32 v86, v86, v8; v_mad_u32_u24 v86, v9, {T3}, v86")
    S("s_mul_i32 {T0}, {C}, %d; s_sub_u32 {T0}, {T0}, {T1}; s_add_u32 {T0}, {T0}, %d" % (UCH, UB + 256))
    S("v_lshl_add_u32 v87, v7, 4, {T0}; v_lshl_add_u32 v87, v6, 5, v87")
    S("v_lshl_add_u32 v8, v7, 2, v6; v_and_b32 v8, 15, v8; v_lshl_add_u32 v8, v7, 4, v8; s_lshl_b32 {T1}, {Z}, 13; s_add_u32 {T0}, {T2}, {T1}; v_lshl_add_u32 v90, v8, 4, {T0}")
LOG2E = 1.4426950408889634
a("v_mov_b32 v6, 0x%x\nv_mov_b32 v88, 0\ns_waitcnt lgkmcnt(0)" % f2u(LOG2E))
S("s_lshl_b32 {T0}, {C}, 4; s_lshr_b32 {LDT}, {LDT}, {T0}; s_lshl_b32 {LDT}, {LDT}, 16; s_lshr_b32 {DSK}, {DSK}, {T0}; s_lshl_b32 {DSK}, {DSK}, 16")
S("v_mul_f32 v7, {LDT}, v6; v_exp_f32 v7, v7; v_writelane_b32 v88, {DSK}, 0")
stamp(1)
a("s_waitcnt vmcnt(0)")
stamp(2)
for i in range(4): a("v_lshlrev_b32 v%d, 16, v%d" % (26 + i, 26 + i))
a("v_mul_f32 v26, v26, v6\nv_exp_f32 v26, v26")
a("v_cvt_pk_bf16_f32 v7, v7, v26")
a("v_and_b32 v26, 0xffff0000, v7\nv_lshlrev_b32 v7, 16, v7")
a("v_mul_f32 v26, v26, v7\nv_mul_f32 v27, v27, v7")
a("v_mul_f32 v26, 0x%x, v26\nv_mul_f32 v27, 0.15915494, v27" % f2u(-LOG2E))
a("v_mul_f32 v7, 0x%x, v7\nv_mul_f32 v166, v28, v7\nv_mul_f32_e64 v167, v29, -v7" % f2u(2 * USC))
PW = lambda j: 132 + 2 * j
W256 = 132
seeds = ((PW(1), 1.0, 170), (PW(16), 16.0, 172), (W256, 256.0, 174))
for dst, p, t in seeds:
    if p == 1.0: a("v_exp_f32 v%d, v26\nv_fract_f32 v%d, v27" % (t, t + 1))
    else: a("v_mul_f32 v%d, 0x%x, v26\nv_mul_f32 v%d, 0x%x, v27\nv_exp_f32 v%d, v%d\nv_fract_f32 v%d, v%d" % (t, f2u(p), t + 1, f2u(p), t, t, t + 1, t + 1))
    a("v_cos_f32 v%d, v%d\nv_sin_f32 v%d, v%d" % (dst, t + 1, dst + 1, t + 1))
a(".p2align 3")
for dst, p, t in seeds: a("v_pk_mul_f32 %s, %s, %s op_sel_hi:[1,0]" % (vr(dst, 2), vr(dst, 2), vr(t, 2)))
cv = [0]; wq = []
def put(slot, reg):
    d = 180 + cv[0] % 8
    if reg is None: a("v_mov_b32 v%d, 0x3f80" % d)
    else: a("v_cvt_pk_bf16_f32 v%d, v%d, v%d" % (d, reg, reg + 1))
    wq.append("ds_write_addtid_b32 v%d offset:%d" % (d, slot * TROW + TX))
    cv[0] += 1
    if len(wq) == OI("wb", 2):
        while wq: a(wq.pop(0))
def cmul(dst, z, w, tmp, conj=False):
    a("v_pk_mul_f32 %s, %s, %s op_sel_hi:[1,0]" % (vr(tmp, 2), vr(z, 2), vr(w, 2)))
    a("v_pk_fma_f32 %s, %s, %s, %s op_sel:[1,1,0] op_sel_hi:[0,1,1] %s:[1,0,0]" % (vr(dst, 2), vr(z, 2), vr(w, 2), vr(tmp, 2), "neg_hi" if conj else "neg_lo"))
put(slot_of(0, 0), None); put(slot_of(0, 1), PW(1)); put(0, 166)
for j in range(1, 16):
    gz, gd = (166, 168) if j % 2 else (168, 166)
    cmul(gd, gz, PW(16), 170, conj=True)
    put(j, gd)
    if j >= 2:
        cmul(PW(j), PW(j - 1), PW(1), 172)
        put(slot_of(0, j), PW(j))
wm = W256
for m in range(1, 8):
    step = STEP[m]
    if m > 1:
        nw = 174 if m % 2 == 0 else 176
        cmul(nw, wm, W256, 170); wm = nw
    put(slot_of(m, 0), wm)
    for k, rho in enumerate(range(step, 17, step)):
        d, t = (178, 172) if k % 2 else (168, 166)
        cmul(d, wm, PW(rho), t); put(slot_of(m, k + 1), d)
while wq: a(wq.pop(0))
a("ds_write_b32 v91, v91 offset:%d" % (FA - FLG))
stamp(3)
S("s_cmp_lg_u32 {Z}, 0; s_cbranch_scc1 L_kz1")
for z in range(2):
    nt = 1 if z else 4
    lg.q = []
    def kreads(s):
        b = 128 + 20 * (s % 4); o = 64 * (s ^ (4 * z))
        return [("ds_read_b128 %s, v84 offset:%d" % (vr(b, 4), o), ("k", s))] + \
               [("ds_read_b128 %s, v%d offset:%d" % (vr(b + 4 + 4 * q, 4), 80 + q, o), ("k", s)) for q in range(nt)]
    far = ["ds_read_b32 v8, v92 offset:%d" % (FA - FLG)]
    fac = lambda o: o("v_cmp_eq_u32 vcc, 0, v8")
    lds_wait("fa%d" % z, far, fac)
    KLA = 3 if z else 2
    for s in range(KLA):
        for r_, t_ in kreads(s): ds(r_, t_)
    if z: ds(far[0], "fa")
    for s in range(8):
        if s + KLA == 4: lg.wait("fa"); fac(a); a("s_cbranch_vccnz R_fa%d\nB_fa%d:" % (z, z))
        rd = kreads(s + KLA) if s + KLA < 8 else []
        if rd: r_, t_ = rd.pop(0); ds(r_, t_)
        if s == 1 and not z: ds(far[0], "fa")
        lg.wait(("k", s))
        if s == 7: ds("ds_write_b32 v91, v91 offset:%d" % (FT - FLG), "ft")
        b = 128 + 20 * (s % 4)
        for q in range(nt):
            a("v_mfma_f32_16x16x32_bf16 %s, %s, %s, %s" % (vr(224 + 4 * q, 4), vr(b + 4 + 4 * q, 4), vr(b, 4), vr(224 + 4 * q, 4) if s else "0"))
            if rd: r_, t_ = rd.pop(0); ds(r_, t_)
    stamp(4)
    if z: KV = lambda l: 224 + (0 if l <= 4 else 1 if l <= 11 else 2)
    else:
        KV = lambda l: 224 + l
        a("v_fmac_f32 v224, 0x%x, v88\nv_mov_b32 v240, v239\nv_mov_b32 v241, v239\nv_mov_b32 v242, v239" % f2u(USC))
        for i in (0, 1, 2): a("v_mov_b32_dpp v%d, v%d wave_shl:1 row_mask:0xf bank_mask:0xf" % (240 + i, 224 + i))
    for c in range(4):
        b = 128 + 8 * c
        for i in range(8):
            a("v_cvt_pk_bf16_f32 v%d, v%d, v%d" % (b + i, KV(15 - 2 * i + c), KV(14 - 2 * i + c)))
            if i == 3: a("ds_write_b128 v85, %s offset:%d" % (vr(b, 4), KCOPY * c))
        a("ds_write_b128 v85, %s offset:%d" % (vr(b + 4, 4), KCOPY * c + 16))
    if not z:
        a("s_mov_b64 exec, 1")
        a("v_cvt_pk_bf16_f32 v161, v224, 0\nv_cvt_pk_bf16_f32 v162, v225, v224\nv_cvt_pk_bf16_f32 v160, v226, v225")
        a("ds_write_b32 v85, v161 offset:%d\nds_write_b32 v85, v162 offset:%d\nds_write_b64 v85, v[160:161] offset:%d" % (KCOPY + 32, 2 * KCOPY + 32, 3 * KCOPY + 32))
        a("s_mov_b64 exec, -1\ns_branch L_kdone\nL_kz1:")
a("L_kdone:")
lg.q = []
conv_setup()
a("s_waitcnt lgkmcnt(0)")
stamp(5)
a("s_barrier")
stamp(6)
ABUF = (128, 192); BBUF = (160, 96)
def conv_reads(i):
    out = []
    for j in range(8):
        A, B = ABUF[i & 1] + 4 * j, BBUF[i & 1] + 4 * j
        off = 512 * (7 - j) + 64 * (3 - i)
        out.append(("ds_read_b64 %s, v86 offset:%d" % (vr(A, 2), off), ("c", i, j)))
        out.append(("ds_read_b64 %s, v86 offset:%d" % (vr(A + 2, 2), off + 8), ("c", i, j)))
        out.append(("ds_read_b128 %s, v87 offset:%d" % (vr(B, 4), 512 * j + 64 * (3 - i)), ("c", i, j)))
    return out
first = set()
pend = conv_reads(0)
for r_, t_ in pend[:12]: ds(r_, t_)
pend = pend[12:]
exw = []
for i in range(4):
    pend = pend + (conv_reads(i + 1) if i < 3 else [])
    if i < 3:
        order = []
        for mx in range(8): order += [(mx, m) for m in range(mx + 1) if mx + m <= 7] + [(j, mx) for j in range(mx) if j + mx <= 7]
    else:
        order = [(j, n - j) for n in range(8) for j in range(n + 1)]
        assert not pend
        lg.drain()
        ds("ds_write_b32 v91, v91 offset:%d" % (FC - FLG), "fcw")
        fcr = ["ds_read_b32 v8, v92 offset:%d" % (FC - FLG)]
        fcc = lambda o: o("v_cmp_eq_u32 vcc, 0, v8")
        lds_wait("fc", fcr, fcc)
    have = -1
    for k, (j, m) in enumerate(order):
        mx = max(j, m)
        if mx > have:
            upto = mx if i == 0 else (3 if mx <= 3 else 7)
            need = ("c", i, upto)
            while any(t == need for _, t in pend):
                r_, t_ = pend.pop(0); ds(r_, t_)
            lg.wait(need); have = upto
        n = j + m
        acc = vr(224 + 4 * n, 4)
        a("v_mfma_f32_16x16x32_bf16 %s, %s, %s, %s" % (acc, vr(ABUF[i & 1] + 4 * j, 4), vr(BBUF[i & 1] + 4 * m, 4), acc if n in first else "0"))
        first.add(n)
        if i == 3 and m == 0: exw.append((k + 8, n))
        if i == 3 and k == 2: ds(fcr[0], "fc")
        if i == 3 and k == 6: lg.wait("fc"); fcc(a)
        if i == 3 and k == 7: a("s_cbranch_vccnz R_fc\nB_fc:")
        if pend:
            r_, t_ = pend.pop(0); ds(r_, t_)
        elif exw and exw[0][0] <= k:
            n_ = exw.pop(0)[1]; ds("ds_write_b128 v90, %s offset:%d" % (vr(224 + 4 * n_, 4), 1024 * n_), "exw")
for _, n_ in exw: ds("ds_write_b128 v90, %s offset:%d" % (vr(224 + 4 * n_, 4), 1024 * n_), "exw")
lg.drain()
stamp(7)
a("s_barrier")
stamp(8)
a("v_mov_b32 v20, v91")
S("v_lshlrev_b32 v3, 4, v1; v_add_u32 v2, 0x1000, v3")
roles()
S(MKTAG)
S("v_lshrrev_b32 v8, 2, v1; v_mul_u32_u24 v8, 224, v8; v_and_b32 v9, 3, v1; v_lshl_add_u32 v50, v9, 3, v8; s_lshl_b32 {T0}, {V}, 6; s_add_u32 {T0}, {T0}, %d" % W1L)
S("v_add_u32 v50, {T0}, v50; v_add_u32 v51, %d, v50; s_lshl_b32 {T0}, {V}, 7; s_add_u32 {T0}, {T0}, %d; v_add_u32 v48, {T0}, v1" % (8 * 7168, CB))
for i in range(4): a("v_mov_b32 v%d, 0x3f803f80" % (44 + i))

S("s_lshl_b32 {T1}, {LAM}, 15; s_add_u32 {T1}, {T1}, 0x%x; s_lshr_b32 {T2}, {IDX}, 2" % H2)
for q in range(4): S("s_add_u32 {T0}, {T2}, %d; s_and_b32 {T0}, {T0}, 3; s_lshl_b32 {T0}, {T0}, 13; s_add_u32 s%d, {T0}, {T1}" % (q, sQ + q))
px_bases()
S("s_mul_i32 {T0}, {T2}, %d" % (3 * PXS))
for t in range(3): S("s_add_u32 s%d, {T0}, 0x%x" % (sPR + t, PX + PXS * t))
S("s_and_b32 {T0}, {T2}, 15; s_lshl_b32 {T0}, {T0}, 6; s_lshl_b32 {T1}, {LAM}, 15; s_add_u32 s%d, {T0}, {T1}" % sOUT)
S("s_lshl_b32 {T2}, {LAM}, 4; s_add_u32 {T2}, {T2}, {FS}")
for b in (0, 1, 2, 3):
    S("s_xor_b32 {T0}, {T2}, %d; s_mul_i32 {T1}, {T0}, 768; s_add_u32 s%d, {T1}, 0x%x" % (b, sHC + b, HC))
    if b: S("s_mul_i32 {T0}, {T0}, 7168; s_add_u32 s%d, {T0}, 0x%x" % (sG + b, H3))
S("s_mov_b32 s52, 0x70000000; v_lshlrev_b32 v0, 2, v1")
S("v_bfe_u32 v8, v1, 2, 2; v_mul_u32_u24 v27, 320, v8; v_lshrrev_b32 v8, 5, v1; v_lshl_add_u32 v27, v8, 11, v27; v_bfe_u32 v8, v1, 4, 1; v_lshl_add_u32 v27, v8, 5, v27")
S("v_and_b32 v8, 1, v1; v_lshl_add_u32 v27, v8, 4, v27; v_bfe_u32 v8, v1, 1, 1; v_lshl_add_u32 v27, v8, 3, v27; v_add_u32 v27, %d, v27" % W2L)
S("v_and_b32 v8, 15, v1; v_lshrrev_b32 v9, 4, v1; v_lshlrev_b32 v24, 4, v9; v_add_u32 v24, %d, v24" % CB)
S("s_mul_i32 {T0}, {V}, %d; v_mul_u32_u24 v25, %d, v8; v_add_u32 v25, {T0}, v25" % (BWAVE, 2 * BROW))
S("v_and_b32 v5, 1, v9; v_mul_u32_u24 v5, %d, v5; v_lshrrev_b32 v6, 1, v9; v_lshl_add_u32 v5, v6, 5, v5; v_add_u32 v5, v5, v25" % BROW)
S("v_and_b32 v7, 1, v9; v_lshlrev_b32 v22, 10, v7; v_lshl_add_u32 v22, v6, 8, v22; v_lshl_add_u32 v22, v8, 3, v22; v_add_u32 v23, 0x1000, v22")
S("v_lshrrev_b32 v8, 2, v1; v_mul_u32_u24 v8, 224, v8; v_and_b32 v9, 3, v1; v_lshl_add_u32 v8, v9, 3, v8; v_add_u32 v18, %d, v8; v_add_u32 v19, %d, v8" % (W1L, W1L + 8 * 7168))
a("v_mov_b32 v4, 0xeeee4444")
S("s_and_b32 {T0}, {P}, 0xfc; s_lshl1_add_u32 {T0}, {T0}, {V}; s_lshl2_add_u32 {T0}, {T0}, {FLO}; s_lshl2_add_u32 s53, {T0}, 0x%x; v_mov_b32 v6, {TAG}" % LFB)
a("v_mov_b32 v14, 0x%x\nv_mov_b32 v15, 0x%x\nv_mov_b32 v16, 1.0\nv_mov_b32 v17, 1.0" % (f2u(-2 * 0.7978845608028654 * LOG2E * 0.044715), f2u(-2 * 0.7978845608028654 * LOG2E)))
WA = (56, 57, 58, 59); WB = (60, 61, 62, 63)
for t in range(4): a("v_xor_b32 v%d, %d, v27\nv_add_u32 v%d, %d, v%d" % (WA[t], 64 * t, WB[t], 2 * 28672, WA[t]))
def zero_acc(o):
    for i in range(28): o("v_mov_b64 %s, 0" % vr(128 + 2 * i, 2))
def csreads(s):
    b = 96 + 8 * (s % 4)
    return [("ds_read_b64_tr_b16 %s, v%d offset:%d" % (vr(b + 4 * tt + 2 * hf, 2), 50 + s // 8, (s % 8) * 7168 + 3584 * hf + 32 * tt), ("cs", s)) for tt in range(2) for hf in range(2)]
def colsum():
    for s in range(3):
        for r_, t_ in csreads(s): ds(r_, t_)
    for s in range(1 if OI("nocs") else 16):
        if s + 3 < 16:
            for r_, t_ in csreads(s + 3): ds(r_, t_)
        lg.wait(("cs", s))
        b = 96 + 8 * (s % 4)
        for tt in range(2):
            a("v_mfma_f32_16x16x32_bf16 %s, %s, v[44:47], %s" % (vr(184 + 4 * tt, 4), vr(b + 4 * tt, 4), vr(184 + 4 * tt, 4) if s else "0"))
        if not CSE and len(hq) > 64 - 4 * LA: hnext()
        if not CSE and s >= 13:
            for r_, t_ in wreads(0)[5 * (s - 13):5 * (s - 12)]: ds(r_, t_)
    a("s_mov_b32 exec_lo, 0x00010001\ns_mov_b32 exec_hi, 0x00010001")
    a("ds_write_b128 v48, v[184:187]\nds_write_b128 v48, v[188:191] offset:64")
    if not CSE: a("ds_write_b32 v20, v20 offset:%d" % (FK - FLG))
    a("s_mov_b64 exec, -1")
if CSE:
    a("v_mov_b32 v92, %d" % FLG)
    all4("fw", FK)
    colsum()
zero_acc(a)
a("s_waitcnt lgkmcnt(0)\ns_barrier")
stamp(9)
ool("R_redo:\ns_sub_u32 s%d, s%d, 16\ns_cbranch_scc0 R_redo2\ns_mov_b32 s%d, 0\ns_branch B_redo\nR_redo2:\ns_waitcnt vmcnt(0) lgkmcnt(0)\ns_nop 7\ns_nop 7" % (sBUD, sBUD, sBUD))
zero_acc(ool); ool("s_branch L_g1start")
a("s_setprio %d" % OI("prio2", 1))
a("L_g1start:")
LA = OI("la1", 4)
HOFF = (0, 128, 512, 640)
def hbuf(s): return 64 + 8 * (s % 8)
def hload_s(s, i):
    return "buffer_load_dwordx2 %s, v%d, %s, s%d offen offset:%d sc1" % (vr(hbuf(s) + 2 * i, 2), 23 if s & 2 else 22, WSR, sQ + s // 4, HOFF[i] + 2048 * (s & 1))
hq = [(s, i) for s in range(16) for i in range(4)]
def hnext():
    s, i = hq.pop(0)
    if OI("nohl") and s >= 8: return
    vmem(hload_s(s, i), ("h", s))
def wbuf(s): return 200 + 28 * (s & 1)
def wreads(s):
    return [("ds_read_b64_tr_b16 %s, v%d offset:%d" % (vr(wbuf(s) + 4 * T + 2 * hf, 2), 18 + s // 8, (s % 8) * 7168 + 3584 * hf + 32 * T), ("w", s, T // 4)) for T in range(7) for hf in range(2)]
assert LA <= 4
for _ in range(4): hnext()
if CSE:
    rd = wreads(0)
    while len(hq) > 64 - 4 * LA:
        hnext()
        for _ in range(2):
            if rd: r_, t_ = rd.pop(0); ds(r_, t_)
    for r_, t_ in rd: ds(r_, t_)
else: colsum()
NCHK = OI("nchk", 6)
BFS = OI("bfs", 11)
assert NCHK <= BFS <= 15 and OI("ffs", 12) >= max(BFS, 12)
def hprep(s):
    b = hbuf(s)
    if NCHK <= s <= BFS:
        return [L_(vm.wait, ("h", s)), L_(a, "v_max3_f32 v21, |v%d|, |v%d|, %s" % (b + 1, b + 3, "v21" if s > NCHK else "0")), L_(a, "v_max3_f32 v21, |v%d|, |v%d|, v21" % (b + 5, b + 7))]
    c = hugecheck((b + 1, b + 3, b + 5, b + 7))
    retry_block("h%d" % s, [hload_s(s, i) for i in range(4)], lambda o: [o(x) for x in c])
    return [L_(vm.wait, ("h", s))] + [L_(a, x) for x in c] + [L_(a, "s_cbranch_vccnz R_h%d\nB_h%d:" % (s, s))]
for f in hprep(0): f()
stamp(10)
def cbread(T):
    b = 184 + 8 * (T % 2)
    ds("ds_read_b128 %s, v24 offset:%d" % (vr(b, 4), 64 * T), ("cb", T))
    ds("ds_read_b128 %s, v24 offset:%d" % (vr(b + 4, 4), 512 + 64 * T), ("cb", T))
str_ = ["ds_read_b32 v9, v20 offset:%d" % (FS_ - FLG), "ds_read2_b64 v[10:13], v25 offset0:16 offset1:34",
        "ds_read_b128 v[184:187], v24", "ds_read_b128 v[188:191], v24 offset:512"]
stc = ["v_cmp_eq_u32 vcc, 0, v9"]
lds_wait("st", str_, lambda o: [o(x) for x in stc])
VG = (0, 4, 7, 11)
D2 = (1, 2, 3, 12)
for s in range(16):
    b = hbuf(s)
    rd = wreads(s + 1) if s < 15 else []
    prep = hprep(s + 1) if s < 15 else []
    slots = (5, 6, 8, 10, 13)
    pat = dict(zip(slots[len(slots) - len(prep):], prep))
    for k in range(14):
        T, tau = k // 2, k % 2
        if k == 0: lg.wait(("w", s, 0))
        if k == 8: lg.wait(("w", s, 1))
        a("v_smfmac_f32_16x16x64_bf16 %s, %s, %s, v4%s" % (vr(128 + 8 * T + 4 * tau, 4), vr(wbuf(s) + 4 * T, 4), vr(b, 8), " abid:1" if tau else ""))
        had = bool(hq)
        if k in VG and hq: hnext()
        else:
            for _ in range(2 if (k in D2 and (had or len(rd) > 14 - k)) else 1):
                if rd: r_, t_ = rd.pop(0); ds(r_, t_)
        if pat.get(k): pat[k]()
        if s == BFS and k == 1: a("v_cmp_le_f32 vcc, s52, v21")
        if s == BFS and k == 3: a("s_cbranch_vccnz R_redo\nB_redo:")
        if s == OI("ffs", 12) and k == 4: ds("ds_write_b32 v20, v20 offset:%d" % (FF - FLG), "ffw")
        if s == 15 and 6 <= k < 10: ds(str_[k - 6], "st" if k == 6 else ("cb", 0))
        if s == 15 and k == 12: lg.wait("st"); a(stc[0])
        if s == 15 and k == 13: a("s_cbranch_vccnz R_st\nB_st:")
    assert not rd, (s, len(rd))
    if s % 2: stamp(1 + s // 2, "g1")
stamp(11)
GR = ((0, 1, 2), (3, 4), (5, 6))
units = []; p_ = 0
for gi, g_ in enumerate(GR):
    for b in (1, 2, 3):
        fr = []
        for T in g_:
            fr.append((T, 64 + 4 * p_ if p_ < 16 else 232 + 4 * (p_ - 16))); p_ += 1
        u = len(units)
        units.append((gi, b, fr, 252 + u if u < 4 else 8 + u))
def uloads(u):
    gi, b, fr, rec = units[u]
    return ["buffer_load_dwordx4 %s, v%d, %s, s%d offen offset:%d sc1" % (vr(r, 4), 2 if T >= 4 else 3, WSR, sG + b, 1024 * (T % 4)) for T, r in fr] + \
           ["buffer_load_dword v%d, v0, %s, s%d offen offset:%d sc1" % (rec, WSR, sHC + b, 256 * gi)]
gq = [(l_, ("u", u)) for u in range(9) for l_ in uloads(u)]
def gnext():
    if gq: vmem(*gq.pop(0))
OWN = lambda T: 28 + 4 * T
EARLY = OI("early", 0)
assert EARLY <= 12
for T in range(7):
    if GT and T == GT: vmem("buffer_store_dword v6, off, %s, s53" % WSR, "h1s")
    if T < 6: cbread(T + 1)
    lg.wait(("cb", T))
    cb = 184 + 8 * (T % 2)
    o = OWN(T)
    prs = [(tau, h) for tau in range(2) for h in range(2)]
    Z = lambda tau, h: 128 + 8 * T + 4 * tau + 2 * h
    Ee = lambda tau, h: 224 + 4 * tau + 2 * h
    ne = max(0, min(4, EARLY - 4 * (6 - T)))
    a(".p2align 3")
    for tau, h in prs: a("v_pk_fma_f32 %s, %s, %s, %s op_sel:[0,1,0] op_sel_hi:[1,1,1] neg_lo:[1,0,0] neg_hi:[1,0,0]" % (vr(Ee(tau, h), 2), vr(cb + 2 * h, 2), vr(10 + 2 * tau, 2), vr(cb + 4 + 2 * h, 2)))
    for tau, h in prs: a("v_pk_fma_f32 %s, %s, %s, %s op_sel_hi:[1,0,1]" % (vr(Z(tau, h), 2), vr(Z(tau, h), 2), vr(10 + 2 * tau, 2), vr(Ee(tau, h), 2)))
    if ne > 3: gnext()
    for tau, h in prs: a("v_pk_mul_f32 %s, %s, %s" % (vr(Ee(tau, h), 2), vr(Z(tau, h), 2), vr(Z(tau, h), 2)))
    for tau, h in prs: a("v_pk_fma_f32 %s, %s, v[14:15], v[14:15] op_sel:[0,0,1] op_sel_hi:[1,0,1]" % (vr(Ee(tau, h), 2), vr(Ee(tau, h), 2)))
    for tau, h in prs: a("v_pk_mul_f32 %s, %s, %s" % (vr(Ee(tau, h), 2), vr(Ee(tau, h), 2), vr(Z(tau, h), 2)))
    if ne > 2: gnext()
    for k in range(8): a("v_exp_f32 v%d, v%d" % (224 + k, 224 + k))
    if ne > 1: gnext()
    for tau, h in prs: a("v_pk_add_f32 %s, %s, v[16:17]" % (vr(Ee(tau, h), 2), vr(Ee(tau, h), 2)))
    for k in range(8): a("v_rcp_f32 v%d, v%d" % (224 + k, 224 + k))
    if ne > 0: gnext()
    for tau, h in prs: a("v_pk_mul_f32 %s, %s, %s" % (vr(Ee(tau, h), 2), vr(Ee(tau, h), 2), vr(Z(tau, h), 2)))
    for tau, h in ((0, 0), (1, 0), (0, 1), (1, 1)): a("v_cvt_pk_bf16_f32 v%d, v%d, v%d" % (o + 2 * tau + h, Ee(tau, h), Ee(tau, h) + 1))
    gi = [i for i, g_ in enumerate(GR) if T in g_][0]
    a("v_permlane16_swap_b32 v%d, v%d" % (o, o + 2))
    a("v_add3_u32 v9, v%d, v%d, %s" % (o, o + 2, "s%d" % sTAG if T == GR[gi][0] else "v9"))
    a("v_permlane16_swap_b32 v%d, v%d" % (o + 1, o + 3))
    vmem("buffer_store_dwordx4 %s, v%d, %s, s%d offen offset:%d sc1" % (vr(o, 4), 2 if T >= 4 else 3, WSR, sH3OWN, 1024 * (T % 4)), "h1s")
    a("v_add3_u32 v9, v%d, v%d, v9" % (o + 1, o + 3))
    if T == GR[gi][-1]: vmem("buffer_store_dword v9, v0, %s, s%d offen offset:%d sc1" % (WSR, sHC, 256 * gi), "h1s")
stamp(12)
a("s_barrier")
stamp(13)

ks_own = [(0, T, OWN(T), None) for T in range(7)]
ks_for = [(b, T, r, u) for u, (gi, b, fr, rec) in enumerate(units) for T, r in fr]
NP1 = OI("np1", 9)
PULL = OI("pull", 0)
work = [(k, t) for k in ks_own for t in (1, 2, 3)] + [(k, 0) for k in ks_own[:PULL]]
work += [(k, t) for k in ks_for[:NP1] for t in (1, 2, 3)]
for t in (1, 2, 3): work += [(k, t) for k in ks_for[NP1:]]
work += [(k, 0) for k in ks_own[PULL:] + ks_for]
assert len(work) == 112
ACC = lambda t: 128 + 16 * t
WR = lambda n: 192 + 4 * (n % 8)
def w2reads(n):
    (b, T, _, _), t = work[n]
    return ["ds_read_b64_tr_b16 %s, v%d offset:%d" % (vr(WR(n) + 2 * e4, 2), (WA if b < 2 else WB)[t], 28672 * (b & 1) + 4096 * T + 1024 * e4) for e4 in range(2)]
WLA = 6
def sumcheck(regs, rec):
    c = ["v_add3_u32 v8, v%d, v%d, %s" % (regs[i], regs[i + 1], "v8" if i else "s%d" % sTAG) for i in range(0, len(regs), 2)]
    return c + ["v_cmp_ne_u32 vcc, v8, v%d" % rec]
gap = {n: [] for n in range(-1, 113)}
def place(n0, groups, step=1):
    for i, g_ in enumerate(groups): gap[min(112, n0 + step * i)] += g_
first_use = {}; last_of = {}
for n, ((b, T, r, u), t) in enumerate(work):
    if u is not None and u not in first_use: first_use[u] = n
    last_of[t] = n
nxt = 999; vstart = {}
chunks = {}
for u in reversed(range(9)):
    gi, b, fr, rec = units[u]
    c = sumcheck([r + i for T, r in fr for i in range(4)], rec)
    retry_block("q%d" % u, uloads(u), lambda o, c=c: [o(x) for x in c])
    ops = [L_(vm.wait, ("u", u))] + [L_(a, x) for x in c]
    grp = [ops[i:i + 2] for i in range(0, len(ops), 2)] + [[L_(a, "s_cbranch_vccnz R_q%d\nB_q%d:" % (u, u))]]
    end = min(first_use[u] - 1, nxt - 1)
    vstart[u] = end - len(grp) + 1
    chunks[u] = grp; nxt = vstart[u]
for u in range(9): place(vstart[u], chunks[u])
SND = (224, 225, 226, 228, 229, 230, 24, 25, 26)
def send(t):
    cv_ = ["v_cvt_pk_bf16_f32 v%d, v%d, v%d" % (SND[i], ACC(t) + 2 * i, ACC(t) + 2 * i + 1) for i in range(8)]
    ad = ["v_add3_u32 v26, v%d, v%d, %s" % (SND[i], SND[i + 1], "v26" if i else "s%d" % sTAG) for i in range(0, 8, 2)]
    st = lambda h: L_(vmem, "buffer_store_dwordx3 %s, v17, %s, s%d offen offset:%d sc1" % (vr(SND[3 * h], 3), WSR, sPS + t, 768 * h), "ps")
    A = lambda *x: [L_(a, y) for y in x]
    return [A(*cv_[0:3]), [st(0)] + A(cv_[3]), A(cv_[4], cv_[5], ad[0]), [st(1)] + A(cv_[6]), A(cv_[7], ad[1], ad[2]), A(ad[3]) + [st(2)]]
snext = 0
for t in (1, 2, 3):
    n0 = max(last_of[t] + 4, snext); place(n0, send(t)); snext = n0 + 6
    last_of["s", t] = n0 + 5
base = [[L_(a, "v_mul_u32_u24 v17, 12, v1")]]
base += [[L_(ds, "ds_read_b128 %s, v5 offset:%d" % (vr(128 + 4 * q, 4), 64 * (q >> 1) + 16 * (q & 1)), "b2")] for q in range(4)]
GST, GS = OI("gstep", 1), (OI("gs0", 0), OI("gs1", 14), OI("gs2", 26))
lat = []; n_ = 0
for _, (_, u) in gq:
    n_ = max(n_, GS[units[u][0]]); lat.append(n_); n_ += GST
first0 = min(min(n for n, (_, t) in enumerate(work) if t == 0) - 3, last_of[1])
free = [n for n in range(0, first0) if not gap[n] and n not in lat]
free += [n for n in reversed(range(0, first0)) if not gap[n] and n not in free]
free = sorted(free[:len(base)])
assert len(free) == len(base)
for n, g_ in zip(free, base): gap[n] += g_
RCV = lambda t: [ACC(t) + 4 * (i // 3) + i % 3 for i in range(9)]
def rloads(t): return ["buffer_load_dwordx3 %s, v17, %s, s%d offen offset:%d sc1" % (vr(ACC(t) + 4 * h, 3), WSR, sPR + t - 1, 768 * h) for h in range(3)]
RLAG = OI("rlag", 40)
for t in (1, 2, 3):
    retry_block("r%d" % t, rloads(t), lambda o, t=t: [o(x) for x in sumcheck(RCV(t)[:8], RCV(t)[8])])
    place(last_of["s", t] + 1 + RLAG, [[L_(vmem, l_, ("r", t))] for l_ in rloads(t)], 2)
place(snext, [[L_(a, "v_and_b32 v10, 15, v1\nv_lshlrev_b32 v10, 11, v10")], [L_(a, "v_bfe_u32 v11, v1, 4, 1\nv_lshl_add_u32 v10, v11, 5, v10")],
              [L_(a, "v_lshrrev_b32 v11, 5, v1\nv_lshl_add_u32 v4, v11, 4, v10")]])
for n in range(WLA):
    for r_ in w2reads(n): ds(r_, ("w2", n))
started = {0}
for n, ((b, T, r, u), t) in enumerate(work):
    if n % 2 == 0: lg.wait(("w2", min(n + 1, 111)))
    if t == 0: lg.wait("b2")
    acc = vr(ACC(t), 16)
    a("v_mfma_f32_32x32x16_bf16 %s, %s, %s, %s" % (acc, vr(WR(n), 4), vr(r, 4), acc if t in started else "0"))
    started.add(t)
    if n + WLA < 112:
        for r_ in w2reads(n + WLA): ds(r_, ("w2", n + WLA))
    if n in lat: gnext()
    for u_ in range(9):
        if n == vstart[u_]: assert not any(t_ == ("u", u_) for _, t_ in gq), u_
    for f in gap[n]: f()
    if n % 14 == 13: stamp(1 + n // 14, "g2")
stamp(14)
for f in gap[112]: f()
SUM = 192
for t in (1, 2, 3):
    vm.wait(("r", t))
    stamp(2 * t - 1, "tail")
    for x in sumcheck(RCV(t)[:8], RCV(t)[8]): a(x)
    a("s_cbranch_vccnz R_r%d\nB_r%d:" % (t, t))
    stamp(2 * t, "tail")
    for i in range(8):
        a("v_lshlrev_b32 v%d, 16, v%d\nv_and_b32 v%d, 0xffff0000, v%d" % (SUM + 2 * i, RCV(t)[i], SUM + 2 * i + 1, RCV(t)[i]))
    for i in range(8):
        a("v_pk_add_f32 %s, %s, %s" % (vr(128 + 2 * i, 2), vr(128 + 2 * i, 2), vr(SUM + 2 * i, 2)))
for i in (0, 4, 1, 5, 2, 6, 3, 7): a("v_cvt_pk_bf16_f32 v%d, v%d, v%d" % (224 + i, 128 + 2 * i, 129 + 2 * i))
for i in range(4): a("v_permlane16_swap_b32 v%d, v%d" % (224 + i, 228 + i))
stamp(7, "tail")
OUTF = opt.get("outf", "nt").replace("plain", "")
for h in range(2): vmem("buffer_store_dwordx4 %s, v4, %s, s%d offen offset:%d %s" % (vr(224 + 4 * h, 4), sr(OUTS, 4), sOUT, 1024 * h, OUTF), "out")
if OI("dbg"): print("first_use", first_use, "vstart", vstart, "last_of", last_of, "free", free)
finish("M")
ool("L_code_end:\ns_endpgm")

tot = 0; body = []
for part in (ent, hh_, mm_, ool):
    if OI("clk"): part.l = [l.replace("s_memrealtime", "s_memtime") for l in part.l]
    lines, added = hazard.fix(part.l, verbose=OI("hv")); tot += added; body += lines
open(sys.argv[1], "w").write(build_file([(name, 256, 512, LDS_BYTES)], "\n".join(body) + "\n", [descriptor(name, 256, 256, 102)]))
print("wrote", sys.argv[1], "nops added", tot)
```
